```python
import torch

def _softmax(x, axis=-1):
    return torch.softmax(x, dim=axis)
def _gelu(x):
    return torch.nn.functional.gelu(x, approximate="tanh")
def _silu(x):
    return torch.nn.functional.silu(x)
def _sigmoid(x):
    return torch.sigmoid(x)
def _layernorm(x, axis=-1, eps=1e-5):
    m = x.mean(dim=axis, keepdim=True)
    v = x.var(dim=axis, keepdim=True, unbiased=False)
    return (x - m) / torch.sqrt(v + eps)
def _scatter_add(tgt, idx, src, axis=0):
    return tgt.clone().index_add_(axis, idx, src)
def _segment_sum(src, seg, n):
    out = torch.zeros((n,) + src.shape[1:], dtype=src.dtype)
    return out.index_add_(0, seg, src)
def _pad(x, pw):
    flat = tuple(v for pair in reversed(pw) for v in pair)
    return torch.nn.functional.pad(x, flat)

kernel_name = 'gated_mix__ssm_conv_s4__geglu_ffn__prompt'

def setup_inputs():

    _w = (lambda a: (lambda t: t.to(torch.bfloat16) if t.is_floating_point() else t)(torch.as_tensor(a)))
    def _A_setup():
        B, L, D, N = 1, 2048, 448, 256
        A_re = -(lambda _x: torch.exp(torch.as_tensor(_x)))((lambda *s: torch.randn(*s, dtype=torch.bfloat16) * 3.2)(D, N))
        A_im = torch.pi * (lambda *s: torch.randn(*s, dtype=torch.bfloat16) * 0.05)(D, N)
        B_re = (lambda *s: torch.randn(*s, dtype=torch.bfloat16) * 0.05)(D, N)
        B_im = (lambda *s: torch.randn(*s, dtype=torch.bfloat16) * 0.05)(D, N)
        C_re = (lambda *s: torch.randn(*s, dtype=torch.bfloat16) * 0.1)(D, N)
        C_im = (lambda *s: torch.randn(*s, dtype=torch.bfloat16) * 0.1)(D, N)
        log_dt = (lambda *s: torch.randn(*s, dtype=torch.bfloat16) * 0.05)(D) * 0.5 - 4.0
        Dskip = (lambda *s: torch.randn(*s, dtype=torch.bfloat16) * 0.05)(D)
        return {
            "u": _w((lambda *s: torch.randn(*s, dtype=torch.bfloat16) * 0.05)(B, L, D)),
            "A_re": _w(A_re),
            "A_im": _w(A_im),
            "B_re": _w(B_re),
            "B_im": _w(B_im),
            "C_re": _w(C_re),
            "C_im": _w(C_im),
            "log_dt": _w(log_dt),
            "Dskip": _w(Dskip),
        }
    _A_in = _A_setup()

    def _B_setup():
        B, S, D, F = 1, 2048, 448, 1792
        return {
            "x": _w((lambda *s: torch.randn(*s, dtype=torch.bfloat16) * 0.05)(B, S, D)),
            "w_gate": _w((lambda *s: torch.randn(*s, dtype=torch.bfloat16) * 0.05)(D, F)),
            "w_up": _w((lambda *s: torch.randn(*s, dtype=torch.bfloat16) * 0.05)(D, F)),
            "w_down": _w((lambda *s: torch.randn(*s, dtype=torch.bfloat16) * 0.05)(F, D)),
        }
    _B_in = _B_setup()

    return {
        "A_u": _A_in["u"],
        "A_A_re": _A_in["A_re"],
        "A_A_im": _A_in["A_im"],
        "A_B_re": _A_in["B_re"],
        "A_B_im": _A_in["B_im"],
        "A_C_re": _A_in["C_re"],
        "A_C_im": _A_in["C_im"],
        "A_log_dt": _A_in["log_dt"],
        "A_Dskip": _A_in["Dskip"],
        "B_x": _B_in["x"],
        "B_w_gate": _B_in["w_gate"],
        "B_w_up": _B_in["w_up"],
        "B_w_down": _B_in["w_down"],
        "gate_w": _w((lambda *s: torch.randn(*s, dtype=torch.bfloat16) * 0.05)(448) * 16.0),
    }

def reference(A_u, A_A_re, A_A_im, A_B_re, A_B_im, A_C_re, A_C_im, A_log_dt, A_Dskip, B_x, B_w_gate, B_w_up, B_w_down, gate_w):
    def _A_ref(u, A_re, A_im, B_re, B_im, C_re, C_im, log_dt, Dskip):
        Bsz, L, D = u.shape
        dt = torch.exp(log_dt)[:, None]
        A = A_re + 1j * A_im
        Bc = B_re + 1j * B_im
        Cc = C_re + 1j * C_im
        logdA = dt * A
        dB = dt * Bc
        l = (lambda x, dt: x.to(dt))(torch.arange(L), A_re.dtype)
        P = torch.exp(logdA[:, :, None] * l[None, None, :])
        K = torch.einsum("dn,dnl,dn->dl", Cc, P, dB).real
        L2 = 2 * L
        Kp = _pad(K, ((0, 0), (0, L)))
        up = (lambda x, *d: x.permute(*d))(u, 0, 2, 1)
        up = _pad(up, ((0, 0), (0, 0), (0, L)))
        Kf = (lambda x, axes=(-2,-1): torch.fft.rfft2(x.float(), dim=axes))(Kp[:, None, :], axes=(-2, -1))
        Uf = (lambda x, axes=(-2,-1): torch.fft.rfft2(x.float(), dim=axes))(up[:, :, None, :], axes=(-2, -1))
        Yf = Uf * Kf[None, :, :, :]
        y = (lambda x, s, axes=(-2,-1): torch.fft.irfft2(x, s=s, dim=axes).to(torch.bfloat16))(Yf, (1, L2), axes=(-2, -1))[:, :, 0, :L]
        y = (lambda x, *d: x.permute(*d))(y, 0, 2, 1) + u * Dskip[None, None, :]
        return y

    def _B_ref(x, w_gate, w_up, w_down):
        return (_gelu(x @ w_gate) * (x @ w_up)) @ w_down

    x = A_u
    g = _sigmoid((x * gate_w).sum(-1, keepdims=True))
    a = _A_ref(x, A_A_re, A_A_im, A_B_re, A_B_im, A_C_re, A_C_im, A_log_dt, A_Dskip)
    b = _B_ref(x, B_w_gate, B_w_up, B_w_down)
    return g * a + (1 - g) * b
```

```python
KN = 'gated_mix__ssm_conv_s4__geglu_ffn__prompt'
HEADER = open('cdna_kernels/%s.s.ref' % KN).read().split('; Override launch')[0] if __import__('os').path.exists('cdna_kernels/%s.s.ref' % KN) else ''
ARG = dict(u=0, Are=8, Aim=16, Bre=24, Bim=32, Cre=40, Cim=48, logdt=56, Dskip=64, Bx=72, wg=80, wu=88, wd=96, gw=104, out=112, dbg=120, ws=128)

class K:
    def __init__(self, name, vgpr=256, agpr=0, sgpr=102):
        self.name = name; self.lines = []; self.vgpr = vgpr; self.agpr = agpr; self.sgpr = sgpr
    def __call__(self, s):
        for l in s.strip('\n').split('\n'):
            self.lines.append(l.strip())
        return self
    def text(self):
        o = ['.globl %s' % self.name, '.p2align 8', '.type %s,@function' % self.name, '%s:' % self.name]
        for l in self.lines:
            o.append(l if l.endswith(':') else '    ' + l)
        return '\n'.join(o) + '\n'
    def desc(self):
        acc = (self.vgpr + 3) // 4 * 4
        nfv = acc + self.agpr if self.agpr else self.vgpr
        return f'''.p2align 6
.amdhsa_kernel {self.name}
  .amdhsa_next_free_vgpr {nfv}
  .amdhsa_next_free_sgpr {self.sgpr}
  .amdhsa_accum_offset {acc}
  .amdhsa_group_segment_fixed_size 0
  .amdhsa_kernarg_size 136
  .amdhsa_user_sgpr_count 2
  .amdhsa_user_sgpr_kernarg_segment_ptr 1
  .amdhsa_system_sgpr_workgroup_id_x 1
  .amdhsa_float_denorm_mode_32 3
.end_amdhsa_kernel
'''

def build(kernels, launches):
    s = HEADER
    if len(launches) == 1 and launches[0][0] == KN + '_kernel':
        _, g, b, lds = launches[0]
        s += f'; @launch grid=({g},1,1) block=({b},1,1) lds={lds}\n'
    else:
        for n, g, b, lds in launches:
            s += f'; @launch kernel={n} grid=({g},1,1) block=({b},1,1) lds={lds}\n'
    s += '.amdgcn_target "amdgcn-amd-amdhsa--gfx950"\n.text\n'
    for k in kernels: s += k.text()
    s += '.section .rodata,"a"\n'
    for k in kernels: s += k.desc()
    return s
```

```python
import re
from asmlib import KN, ARG, HEADER

TRANS = ('v_exp_f32', 'v_log_f32', 'v_rcp_f32', 'v_rsq_f32', 'v_sqrt_f32', 'v_sin_f32', 'v_cos_f32')
REG_RE = re.compile(r'^[-|]*(?:abs\()?([vas])(?:(\d+)|\[(\d+):(\d+)\])\)?\|?$')

def split_ops(s):
    out, depth, cur = [], 0, ''
    for ch in s:
        if ch == '[': depth += 1
        if ch == ']': depth -= 1
        if ch == ',' and depth == 0:
            out.append(cur.strip()); cur = ''
        else: cur += ch
    if cur.strip(): out.append(cur.strip())
    return out

def regs_of(tok):
    tok = tok.strip()
    if tok in ('vcc',): return ['vcc']
    if tok in ('exec',): return ['exec']
    if tok == 'm0': return ['m0']
    m = REG_RE.match(tok)
    if not m: return []
    t = m.group(1)
    if m.group(2) is not None: return [t + m.group(2)]
    return [t + str(i) for i in range(int(m.group(3)), int(m.group(4)) + 1)]

class Ins:
    __slots__ = ('text', 'op', 'kind', 'dst', 'src', 'tag', 'ops', 'mods', 'arg')
    def __init__(self, text, tag=None):
        self.text = text = text.split(';')[0].strip()
        self.tag = tag; self.dst = []; self.src = []; self.arg = None; self.ops = []; self.mods = ''
        if text.endswith(':'): self.op = 'label'; self.kind = 'label'; return
        if text.startswith('.'): self.op = text; self.kind = 'dir'; return
        if text.startswith('@'):
            p = text[1:].split(); self.op = p[0]; self.kind = 'pseudo'; self.arg = p[1:]; return
        p = text.split(None, 1)
        op = self.op = p[0]
        rest = p[1] if len(p) > 1 else ''
        ops = split_ops(rest)
        if ops:
            last = ops[-1]; depth = 0; cut = None
            for i, ch in enumerate(last):
                if ch in '[(': depth += 1
                if ch in '])': depth -= 1
                if ch == ' ' and depth == 0: cut = i; break
            if cut is not None:
                self.mods = last[cut:].strip(); ops[-1] = last[:cut]
        self.ops = ops
        R = [regs_of(o) for o in ops]
        allr = lambda a: [r for x in a for r in x]
        base = re.sub(r'_(e32|e64|dpp|sdwa)$', '', op)
        if op.startswith('v_mfma'):
            self.kind = 'mfma'; self.dst = R[0]; self.src = allr(R[1:])
        elif op.startswith('v_'):
            self.kind = 'trans' if base in TRANS else 'valu'
            if base.startswith('v_permlane') and 'swap' in base:
                self.dst = allr(R); self.src = allr(R)
            elif base in ('v_add_co_u32', 'v_sub_co_u32', 'v_addc_co_u32', 'v_subb_co_u32'):
                self.dst = R[0] + R[1]; self.src = allr(R[2:])
            else:
                self.dst = R[0]; self.src = allr(R[1:])
                if base in ('v_fmac_f32', 'v_dot2c_f32_bf16', 'v_writelane_b32') or op.endswith('_dpp') or op.endswith('_sdwa'):
                    self.src = self.src + R[0]
        elif op.startswith('ds_'):
            self.kind = 'ds'
            if op.startswith('ds_read') or op.startswith('ds_bpermute'):
                self.dst = R[0]; self.src = allr(R[1:])
                if 'd16' in op: self.src = self.src + R[0]
            else: self.src = allr(R)
            if 'addtid' in op: self.src = self.src + ['m0']
        elif op.startswith('buffer_') or op.startswith('global_'):
            self.kind = 'vmem'
            islds = (' lds' in ' ' + self.mods) or '_lds_' in op
            if islds: self.src = allr(R) + ['m0']; self.kind = 'dma'
            elif '_load' in op:
                self.dst = R[0]; self.src = allr(R[1:])
                if 'd16' in op: self.src = self.src + R[0]
            else: self.src = allr(R)
        elif op.startswith('s_load') or op in ('s_memtime', 's_memrealtime'):
            self.kind = 'smem'; self.dst = R[0]; self.src = allr(R[1:])
        elif op in ('s_waitcnt',): self.kind = 'wait'
        elif op == 's_nop': self.kind = 'nop'; self.arg = int(ops[0])
        elif op == 's_barrier': self.kind = 'barrier'
        elif op.startswith('s_cbranch') or op in ('s_branch', 's_endpgm'):
            self.kind = 'branch'
            if 'vcc' in op: self.src = ['vcc']
        elif op.startswith('s_cmp') or op in ('s_setprio', 's_sleep') or op.startswith('s_bitcmp'):
            self.kind = 'salu'; self.src = allr(R)
        elif op.startswith('s_'):
            self.kind = 'salu'; self.dst = R[0]; self.src = allr(R[1:])
            if 'saveexec' in op: self.dst = self.dst + ['exec']
        else:
            raise ValueError('unknown instr: ' + text)
    def __repr__(self): return self.text

class Stream(list):
    def __call__(self, s, tag=None):
        for l in s.strip('\n').split('\n'):
            l = l.strip()
            if not l or l.startswith(';'): continue
            self.append([Ins(l, tag)])
        return self
    def atom(self, s, tag=None):
        a = []
        for l in s.strip('\n').split('\n'):
            l = l.strip()
            if not l or l.startswith(';'): continue
            a.append(Ins(l, tag))
        self.append(a); return self
    def add(self, other):
        self.extend(other); return self
    def flat(self): return [i for a in self for i in a]

def cost(atom):
    c = 0
    for i in atom:
        if i.kind in ('pseudo', 'label', 'dir'): continue
        c += 2 if i.kind == 'trans' else 1
    return c

def weave(main, fill, budget=6, start=0, stop=None):
    idx = [n for n, a in enumerate(main) if any(i.kind == 'mfma' for i in a)]
    if stop is None: stop = len(idx)
    occ = []
    for g, n in enumerate(idx):
        e = idx[g + 1] if g + 1 < len(idx) else len(main)
        occ.append(sum(cost(a) for a in main[n + 1:e]))
    free = [max(0, budget - o) if start <= g < stop else 0 for g, o in enumerate(occ)]
    total = sum(cost(a) for a in fill); cap = sum(free)
    scale = min(1.0, total / cap) if cap else 0
    out = Stream(); fi = 0; acc = 0.0; used = 0
    g = -1
    ends = {}
    for g, n in enumerate(idx):
        ends[(idx[g + 1] if g + 1 < len(idx) else len(main)) - 1] = g
    for n, a in enumerate(main):
        out.append(a)
        if n in ends:
            g = ends[n]
            acc += free[g] * scale
            while fi < len(fill) and used + cost(fill[fi]) <= acc + 0.5:
                used += cost(fill[fi]); out.append(fill[fi]); fi += 1
    while fi < len(fill): out.append(fill[fi]); fi += 1
    return out

def insert_waits(ins):
    out = []; vm = []; lg = []
    def emit(v=None, l=None):
        nonlocal vm, lg
        parts = []
        if v is not None and len(vm) > v:
            v = min(v, 63); parts.append(f'vmcnt({v})'); vm = vm[len(vm) - v:] if v else []
        if l is not None and len(lg) > l:
            if any(x.kind == 'smem' for x in lg): l = 0
            l = min(l, 15); parts.append(f'lgkmcnt({l})'); lg = lg[len(lg) - l:] if l else []
        if parts: out.append(Ins('s_waitcnt ' + ' '.join(parts)))
    for i in ins:
        if i.kind == 'pseudo':
            if i.op == 'waitvm':
                pos = [n for n, x in enumerate(vm) if x.tag in i.arg]
                if pos: emit(v=len(vm) - 1 - max(pos))
            elif i.op == 'waitlg':
                pos = [n for n, x in enumerate(lg) if (not i.arg) or x.tag in i.arg]
                if pos: emit(l=len(lg) - 1 - max(pos))
            elif i.op == 'waitall': emit(0, 0)
            elif i.op == 'forget':
                vm = []; lg = []
            else: out.append(i)
            continue
        if i.kind == 'wait':
            m = re.search(r'vmcnt\((\d+)\)', i.text)
            if m: n = int(m.group(1)); vm = vm[len(vm) - n:] if (n and len(vm) > n) else (vm if n else [])
            m = re.search(r'lgkmcnt\((\d+)\)', i.text)
            if m: n = int(m.group(1)); lg = lg[len(lg) - n:] if (n and len(lg) > n) else (lg if n else [])
            out.append(i); continue
        touch = set(i.src) | set(i.dst)
        v = l = None
        for n, x in enumerate(vm):
            if touch & set(x.dst):
                if i.kind == 'vmem' and not (set(i.src) & set(x.dst)): continue
                v = len(vm) - 1 - n
        for n, x in enumerate(lg):
            if touch & set(x.dst):
                if i.kind == 'ds' and x.kind == 'ds' and not (set(i.src) & set(x.dst)): continue
                l = len(lg) - 1 - n
        emit(v, l)
        out.append(i)
        if i.kind in ('vmem', 'dma'): vm.append(i)
        if i.kind in ('ds', 'smem'): lg.append(i)
    return out

def passes(i): return 8 if '32x32' in i.op else 4
def isv(i): return i.kind in ('valu', 'trans')
def need_ws(p, c):
    pd, ps, cd, cs = set(p.dst), set(p.src), set(c.dst), set(c.src)
    n = 0
    vg = lambda s: {r for r in s if r[0] in 'va' and r != 'vcc'}
    sg = lambda s: {r for r in s if r[0] == 's' or r == 'vcc'}
    if isv(p):
        if c.kind == 'mfma' and vg(pd) & cs: n = max(n, 2)
        if isv(c):
            if c.op.endswith('_dpp') and vg(pd) & cs: n = max(n, 2)
            if c.op.startswith('v_permlane') and vg(pd) & cs: n = max(n, 2)
            if c.op.startswith('v_read') and vg(pd) & cs: n = max(n, 1)
            if sg(pd) & cs: n = max(n, 4 if c.op.startswith(('v_readlane', 'v_writelane')) else 2)
            if p.kind == 'trans' and c.kind != 'trans' and vg(pd) & cs: n = max(n, 1)
            if p.op.endswith('_sdwa') and vg(pd) & (cs | cd): n = max(n, 1)
        if c.kind in ('vmem', 'dma') and sg(pd) & cs: n = max(n, 5)
        if c.kind in ('salu', 'smem', 'branch') and sg(pd) & cs: n = max(n, 1)
        if p.kind == 'trans' and c.kind in ('ds', 'vmem', 'dma') and vg(pd) & cs: n = max(n, 1)
    if p.kind == 'mfma':
        P = passes(p)
        if c.kind == 'mfma':
            cC = set(regs_of(c.ops[3])); cAB = set(regs_of(c.ops[1])) | set(regs_of(c.ops[2]))
            if pd & cAB: n = max(n, P + 4)
            if pd & cC and not (pd == cC and passes(c) == P): n = max(n, P + 2)
            if pd & cd and not (pd & cC): n = max(n, P + 4)
        elif c.kind in ('valu', 'trans', 'ds', 'vmem', 'dma'):
            if pd & (cs | cd): n = max(n, P + 4)
            pC = set(regs_of(p.ops[3]))
            if pC & cd: n = max(n, P - 1)
    if p.kind == 'salu' and 'm0' in pd and 'm0' in cs and c.kind in ('ds', 'dma'): n = max(n, 1)
    if p.kind == 'vmem' and 'store' in p.op and ('x4' in p.op or 'x3' in p.op):
        data = set(regs_of(p.ops[0] if p.op.startswith('buffer') else p.ops[1]))
        if data & cd: n = max(n, 2)
    return n

def insert_nops(ins):
    out = []
    for c in ins:
        if c.kind in ('pseudo', 'dir', 'label'): out.append(c); continue
        need = 0; dist = 0
        for p in reversed(out):
            if p.kind in ('pseudo', 'dir', 'label'): continue
            if dist >= 20: break
            w = need_ws(p, c)
            if w > dist: need = max(need, w - dist)
            dist += (p.arg + 1) if p.kind == 'nop' else 1
        while need > 0:
            k = min(need, 16); out.append(Ins(f's_nop {k - 1}')); need -= k
        out.append(c)
    return out

def finalize(stream):
    ins = insert_nops(insert_waits(stream.flat()))
    return [i.text for i in ins if i.kind != 'pseudo']

class Regs:
    def __init__(self, t, n, first=0):
        self.t = t; self.free_ = [True] * n
        for i in range(first): self.free_[i] = False
        self.hi = first
    def alloc(self, n=1, align=None):
        align = align or (1 if n == 1 else 2)
        for b in range(0, len(self.free_) - n + 1, align):
            if all(self.free_[b:b + n]):
                for i in range(b, b + n): self.free_[i] = False
                self.hi = max(self.hi, b + n)
                return Reg(self.t, b, n)
        raise RuntimeError(f'out of {self.t} regs (need {n})')
    def free(self, *rs):
        for r in rs:
            for i in range(r.b, r.b + r.n):
                assert not self.free_[i], ('double free', r)
                self.free_[i] = True
class Reg:
    def __init__(self, t, b, n): self.t = t; self.b = b; self.n = n
    def __str__(self): return f'{self.t}{self.b}' if self.n == 1 else f'{self.t}[{self.b}:{self.b + self.n - 1}]'
    __repr__ = __str__
    def __format__(self, spec): return str(self)
    def __getitem__(self, k):
        if isinstance(k, slice):
            a = k.start or 0; e = self.n if k.stop is None else k.stop
            assert 0 <= a < e <= self.n, (self, k)
            return Reg(self.t, self.b + a, e - a)
        assert 0 <= k < self.n, (self, k)
        return Reg(self.t, self.b + k, 1)
    def sub(self, a, n): return self[a:a + n]
```

```python
import sys, math, struct
from fw import *
from asmlib import K, build

HOFF = 0
UOFF = 8 << 20
AOFF = 10 << 20
GOFF = 12 << 20
FHOFF = 13 << 20
FAOFF = FHOFF + 1792 * 128
TOFF = 16 << 20
WSB = 32 << 20
L_K = 0
L_U = 8320
L_C = 18560
L_AB = 22720
L_S = 8320
L_R = 32768
def slot(item): return L_R + ((item + 1) % 8) * 16384
def win(addr):
    w = (addr - L_R) // 65536
    return w, addr - L_R - w * 65536
def f2h(x): return hex(struct.unpack('<I', struct.pack('<f', x))[0])
LOG2E = 1.4426950408889634
SPIN = 200000

class Gen:
    def __init__(self, opt):
        self.opt = opt
        self.V = Regs('v', 256, 1); self.A = Regs('a', 256); self.S = Regs('s', 95, 60)
        self.cold = Stream()
        self.nlab = 0
        self.nstamp = 0
    def lab(self, n):
        self.nlab += 1; return f'L_{n}_{self.nlab}'
    def streg(self, i): return Reg('s', 96 + 2*i if i < 2 else 2*i, 2)
    def stamp(self, s, real=False):
        if not self.opt.get('stamps'): return
        s(f'{"s_memrealtime" if (real or self.opt.get("allreal")) else "s_memtime"} {self.streg(self.nstamp)}')
        self.nstamp += 1
    def stamp_out(self, s):
        if not self.opt.get('stamps'): return
        V = self.V
        s('@waitall')
        a = V.alloc(); d = V.alloc(2)
        s(f'''s_lshl_b32 s3, s2, 2
        s_add_u32 s3, s3, {self.sW}
        s_lshl_b32 s3, s3, 7
        s_add_u32 s3, s3, {TOFF}
        v_mov_b32 {a}, 0''')
        for i in range(12):
            s(f'''v_mov_b32 {d[0]}, {self.streg(i)[0]}
            v_mov_b32 {d[1]}, {self.streg(i)[1]}
            buffer_store_dwordx2 {d}, {a}, s[52:55], s3 offen offset:{8*i}
            s_nop 1''')
        V.free(a, d)
    def srd(self, s, d, lo, hi, n):
        s(f'''s_mov_b32 s{d}, {lo}
        s_and_b32 s{d+1}, {hi}, 0xffff
        s_mov_b32 s{d+2}, {n}
        s_mov_b32 s{d+3}, 0x20000''')
    def poll_check(self, s, ld, reg):
        slow = self.lab('slow'); ok = self.lab('ok'); lp = self.lab('lp')
        s(f'v_cmp_ne_u32 vcc, 1, {reg}')
        s.atom(f'''s_cbranch_vccnz {slow}
        {ok}:''')
        c = self.cold
        c(f'''@forget
        {slow}:
        s_mov_b32 s3, 0
        {lp}:
        s_add_u32 s3, s3, 1
        s_cmp_gt_u32 s3, {SPIN}
        s_cbranch_scc1 {ok}
        {ld}
        s_waitcnt vmcnt(0)
        v_cmp_ne_u32 vcc, 1, {reg}
        s_cbranch_vccnz {lp}
        s_branch {ok}''')

    def entry(self):
        s = Stream(); V = self.V; S = self.S
        self.stamp(s, real=True); self.stamp(s)
        self.lane = V.alloc(); self.sW = S.alloc()
        t = V.alloc(); t2 = V.alloc()
        s(f'''
        s_load_dwordx16 s[4:19], s[0:1], 0
        s_load_dwordx16 s[20:35], s[0:1], 64
        s_load_dwordx2 s[36:37], s[0:1], 128
        s_cmp_ge_u32 s2, 256
        s_cbranch_scc1 L_end
        s_getpc_b64 s[38:39]
        L_pc:
        v_lshlrev_b32 {t}, 7, v0
        v_min_u32 {t}, L_end-L_pc, {t}
        global_load_dword {t2}, {t}, s[38:39]
        v_lshrrev_b32 {t}, 6, v0
        v_and_b32 {self.lane}, 63, v0
        v_readfirstlane_b32 {self.sW}, {t}
        s_cmp_lt_u32 s2, 32
        s_cbranch_scc1 L_helper
        ''')
        V.free(t)
        self.pfreg = t2
        return s

    def prologue(self):
        s = Stream(); V = self.V; S = self.S; l = self.lane; W = self.sW
        sM = self.sM = S.alloc(); sRB = self.sRB = S.alloc(); sCB = self.sCB = S.alloc()
        sCOL = self.sCOL = S.alloc(); sR64 = self.sR64 = S.alloc()
        sRG = self.sRG = S.alloc(); sCG = self.sCG = S.alloc()
        sT = self.sT = S.alloc(); sT2 = self.sT2 = S.alloc()
        self.sLW = S.alloc()
        s(f'''
        s_sub_u32 {sM}, s2, 32
        s_lshr_b32 {sT}, {sM}, 3            ; j
        s_and_b32 {sT2}, {sM}, 6
        s_lshl_b32 {sRB}, {sT2}, 1
        s_and_b32 {sT2}, {sT}, 3
        s_add_u32 {sRB}, {sRB}, {sT2}       ; rb
        s_lshr_b32 {sCOL}, {sT}, 2          ; col
        s_and_b32 {sT2}, {sM}, 1
        s_mul_i32 {sCB}, {sT2}, 7
        s_add_u32 {sCB}, {sCB}, {sCOL}      ; cb
        s_lshl_b32 {sR64}, {sRB}, 1
        s_add_u32 {sR64}, {sR64}, {sT2}     ; R64
        s_lshr_b32 {sRG}, {W}, 1
        s_and_b32 {sCG}, {W}, 1
        s_lshl_b32 {self.sLW}, {W}, 12
        ''')
        po = V.alloc()
        s(f'''s_lshl_b32 {sT}, {sM}, 10
        v_lshl_add_u32 {po}, v0, 2, {sT}''')
        vx = self.vx = V.alloc(4); vw = self.vw = V.alloc(4); vd = self.vd = V.alloc(4)
        r8 = V.alloc(); c8 = V.alloc(); g4 = V.alloc(); t = V.alloc(); t2 = V.alloc()
        s(f'''
        v_lshrrev_b32 {r8}, 3, {l}
        v_and_b32 {c8}, 7, {l}
        v_lshrrev_b32 {g4}, 4, {l}
        s_lshl_b32 {sT}, {sRB}, 2
        s_add_u32 {sT}, {sT}, {W}
        s_mul_i32 {sT}, {sT}, {32*896}
        v_mul_u32_u24 {t}, 896, {r8}
        v_add_u32 {t}, {sT}, {t}
        v_xor_b32 {t2}, {c8}, {g4}
        v_lshl_add_u32 {vx[0]}, {t2}, 4, {t}
        v_xor_b32 {t2}, 4, {t2}
        v_lshl_add_u32 {vx[1]}, {t2}, 4, {t}
        v_add_u32 {vx[2]}, {2*(8*896-1024)}, {vx[0]}
        v_add_u32 {vx[3]}, {3*(8*896-1024)}, {vx[1]}
        v_add_u32 {vx[1]}, {8*896-1024}, {vx[1]}
        v_and_b32 {t2}, 1, {g4}
        v_lshlrev_b32 {t2}, 2, {t2}
        v_xor_b32 {t2}, {c8}, {t2}
        s_mul_i32 {sT}, {sCG}, {32*3584}
        s_lshl_b32 {sT2}, {sCB}, 8
        s_add_u32 {sT}, {sT}, {sT2}
        v_mul_u32_u24 {t}, 3584, {r8}
        v_add_u32 {t}, {sT}, {t}
        v_lshl_add_u32 {vw[0]}, {t2}, 4, {t}
        v_add_u32 {vw[1]}, {1*(8*3584-1024)}, {vw[0]}
        v_add_u32 {vw[2]}, {2*(8*3584-1024)}, {vw[0]}
        v_add_u32 {vw[3]}, {3*(8*3584-1024)}, {vw[0]}
        s_lshl_b32 {sT}, {sCOL}, 7
        v_mul_u32_u24 {t}, 896, {r8}
        v_add_u32 {t}, {sT}, {t}
        v_lshl_add_u32 {vd[0]}, {t2}, 4, {t}
        v_add_u32 {vd[1]}, {1*(8*896-1024)}, {vd[0]}
        v_add_u32 {vd[2]}, {2*(8*896-1024)}, {vd[0]}
        v_add_u32 {vd[3]}, {3*(8*896-1024)}, {vd[0]}
        ''')
        V.free(r8, c8, g4, t, t2)
        self.par = V.alloc(6)
        self.sLD = S.alloc(); self.sDS = S.alloc()
        s('@waitlg')
        for n in range(6):
            s(f'global_load_dword {self.par[n]}, {po}, s[{6+2*n}:{7+2*n}]')
        s(f'''s_lshl_b32 {sT}, {sM}, 2
        s_load_dword {self.sLD}, s[18:19], {sT}
        s_load_dword {self.sDS}, s[20:21], {sT}''')
        V.free(po)
        self.srd(s, 40, 's4', 's5', 2048 * 896)
        s.atom(f'''s_cmp_eq_u32 {sRG}, 0
        s_cselect_b32 s44, s24, s26
        s_cselect_b32 s45, s25, s27''')
        s(f'''s_and_b32 s45, s45, 0xffff
        s_mov_b32 s46, {448*3584}
        s_mov_b32 s47, 0x20000''')
        for it in range(7): s.add(self.dma(it))
        self.srd(s, 48, 's28', 's29', 1792 * 896)
        self.srd(s, 52, 's36', 's37', WSB)
        self.srd(s, 56, 's32', 's33', 2048 * 896)
        self.sDU = S.alloc(7)
        for n in range(7):
            s(f'''s_mul_i32 {sT}, {W}, 7
            s_add_u32 {sT}, {sT}, {n}
            s_lshr_b32 {sT2}, {sT}, 1
            s_lshl_b32 {sT2}, {sT2}, 2
            s_and_b32 {sT}, {sT}, 1
            s_add_u32 {sT}, {sT}, {sT2}
            s_mul_i32 {self.sDU[n]}, {sT}, {32*896}''')
        return s

    def dma(self, it):
        s = Stream(); sT = self.sT
        if it < 14 and it % 2 == 0:
            v, srd, so = self.vx, 's[40:43]', f's_mov_b32 {sT}, {(it // 2) * 128}'
        elif it < 21:
            p, c = (0, it // 2) if it < 14 else (1, it - 14)
            v, srd, so = self.vw, 's[44:47]', f's_mov_b32 {sT}, {c * 64 * 3584 + p * 128}'
        else:
            p, n = divmod(it - 21, 7)
            v, srd, so = self.vd, 's[48:51]', f's_add_u32 {sT}, {self.sDU[n]}, {p * 64 * 896}'
        txt = f's_add_u32 m0, {self.sLW}, {slot(it)}\n{so}\n'
        txt += '\n'.join(f'buffer_load_dwordx4 {v[i]}, {srd}, {sT} offen offset:{1024 * i} lds' for i in range(4))
        s.atom(txt, tag=f'it{it}')
        return s

    def addrs(self):
        s = Stream(); V = self.V; l = self.lane; sT = self.sT; sT2 = self.sT2
        i = V.alloc(); G = V.alloc(); t = V.alloc(); t2 = V.alloc(); hl = V.alloc(); t3 = V.alloc()
        ax = self.ax = [V.alloc(4), V.alloc(4)]
        aw = self.aw = V.alloc(2); ad = self.ad = [V.alloc(2), V.alloc(2)]
        self.l16 = V.alloc()
        s(f'''
        v_lshlrev_b32 {self.l16}, 4, {l}
        v_and_b32 {i}, 15, {l}
        v_lshrrev_b32 {G}, 4, {l}
        v_lshrrev_b32 {hl}, 5, {l}
        v_and_b32 {t}, 31, {l}
        s_lshl_b32 {sT}, {self.sRG}, 13
        s_add_u32 {sT}, {sT}, {L_R}
        v_lshl_add_u32 {t}, {t}, 7, {sT}
        v_bfe_u32 {t2}, {l}, 1, 3
        v_xor_b32 {t2}, {t2}, {hl}
        v_lshl_add_u32 {ax[0][0]}, {t2}, 4, {t}
        v_xor_b32 {ax[0][1]}, 32, {ax[0][0]}
        v_xor_b32 {ax[0][2]}, 64, {ax[0][0]}
        v_xor_b32 {ax[0][3]}, 96, {ax[0][0]}''')
        for k in range(4): s(f'v_add_u32 {ax[1][k]}, 0x10000, {ax[0][k]}')
        s(f'''
        v_lshrrev_b32 {t3}, 3, {i}
        v_xor_b32 {t3}, {self.sCG}, {t3}
        v_lshlrev_b32 {t3}, 6, {t3}
        v_lshrrev_b32 {t}, 2, {i}
        v_lshl_add_u32 {t3}, {t}, 7, {t3}      ; (i>>2)*128 + half*64
        v_add_u32 {t3}, {L_R}, {t3}
        ; W: + hl*1024 + (G&1)*32 + (i&3)*8
        v_lshl_add_u32 {t}, {hl}, 10, {t3}
        v_and_b32 {t2}, 1, {G}
        v_lshl_add_u32 {t}, {t2}, 5, {t}
        v_and_b32 {t2}, 3, {i}
        v_lshl_add_u32 {aw[0]}, {t2}, 3, {t}
        v_add_u32 {aw[1]}, 0x10000, {aw[0]}
        v_and_b32 {t}, 1, {i}
        v_lshlrev_b32 {t}, 5, {t}
        v_and_b32 {t2}, 1, {G}
        v_lshl_add_u32 {t}, {t2}, 4, {t}
        v_bfe_u32 {t2}, {i}, 1, 1
        v_lshl_add_u32 {t}, {t2}, 3, {t}
        v_add_u32 {t3}, {t3}, {t}
        v_lshl_add_u32 {t3}, {hl}, 9, {t3}
        v_add_u32 {ad[0][0]}, {self.sLW}, {t3}
        v_xor_b32 {ad[1][0]}, 64, {ad[0][0]}
        v_add_u32 {ad[0][1]}, 0x10000, {ad[0][0]}
        v_add_u32 {ad[1][1]}, 0x10000, {ad[1][0]}
        ''')
        ak = self.ak = V.alloc(); au = self.au = V.alloc()
        s(f'''
        s_mul_i32 {sT}, {self.sRG}, 4160
        s_add_u32 {sT}, {sT}, {L_K + 32}
        v_lshl_add_u32 {t}, {hl}, 6, {t}
        v_lshrrev_b32 {t2}, 2, {i}
        v_lshlrev_b32 {t2}, 3, {t2}
        v_sub_u32 {t}, {t}, {t2}
        v_add_u32 {ak}, {sT}, {t}
        s_mul_i32 {sT}, {self.sRG}, 5120
        s_lshl_b32 {sT2}, {self.sCG}, 9
        s_add_u32 {sT}, {sT}, {sT2}
        s_add_u32 {sT}, {sT}, {L_U + 1024 - 14*64}
        v_and_b32 {t}, 1, {G}
        v_and_b32 {t2}, 3, {l}
        v_lshl_add_u32 {t}, {t}, 2, {t2}        ; a'
        v_sub_u32 {t2}, {t}, {hl}
        v_lshlrev_b32 {t2}, 6, {t2}
        v_add_u32 {t2}, {sT}, {t2}
        v_lshrrev_b32 {t3}, 2, {i}
        v_lshl_add_u32 {au}, {t3}, 4, {t2}
        ''')
        self.vg = V.alloc()
        s(f'''
        v_lshl_add_u32 {t}, {t}, 1, {hl}
        v_lshl_add_u32 {t}, {t3}, 5, {t}
        s_lshl_b32 {sT}, {self.sCG}, 4
        v_add_u32 {self.vg}, {sT}, {t}
        ''')
        V.free(i, G, t, t2, hl, t3)
        return s

    def cmul_batch(self, s, items, tmp):
        for n, (d, a, b) in enumerate(items):
            s(f'v_pk_mul_f32 {tmp.sub(2*n, 2)}, {a}, {b} op_sel:[0,0] op_sel_hi:[0,1]')
        for n, (d, a, b) in enumerate(items):
            s(f'v_pk_fma_f32 {d}, {a}, {b}, {tmp.sub(2*n, 2)} op_sel:[1,1,0] op_sel_hi:[1,0,1] neg_lo:[0,1,0]')
    def kgen(self):
        s = Stream(); V = self.V; S = self.S; l = self.lane; sT = self.sT; sT2 = self.sT2
        dt = V.alloc(2); acc = V.alloc(16, 4); af = V.alloc(); sSC = S.alloc()
        t = V.alloc(); hl = V.alloc()
        s(f'''
        s_mul_i32 {sSC}, {self.sW}, 8704
        s_add_u32 {sSC}, {sSC}, {L_S}
        v_and_b32 {t}, 31, {l}
        v_mul_u32_u24 {t}, 272, {t}
        v_lshrrev_b32 {hl}, 5, {l}
        v_lshl_add_u32 {t}, {hl}, 4, {t}
        v_add_u32 {af}, {sSC}, {t}
        s_lshl_b32 {sT}, {self.sRG}, 4
        s_lshr_b32 {self.sLD}, {self.sLD}, {sT}
        s_lshl_b32 {self.sLD}, {self.sLD}, 16
        s_lshr_b32 {self.sDS}, {self.sDS}, {sT}
        s_lshl_b32 {self.sDS}, {self.sDS}, 16
        v_mov_b32 {t}, {f2h(LOG2E)}
        v_mul_f32 {t}, {self.sLD}, {t}
        v_exp_f32 {t}, {t}
        v_cvt_pk_bf16_f32 {t}, {t}, {t}
        v_lshlrev_b32 {dt[0]}, 16, {t}
        v_lshlrev_b32 {dt[1]}, 16, {t}
        s_mov_b32 m0, {sSC}
        ''')
        P = V.alloc(6); tmp = V.alloc(10); cv = V.alloc(8)
        z = V.alloc(2); y1 = V.alloc(2); y4 = V.alloc(2); vv = V.alloc(2); z2 = V.alloc(2); z4 = V.alloc(2)
        c = V.alloc(8); X = V.alloc(18); Yf = V.alloc(32, 4); Xf = V.alloc(32, 4)
        ncv = [0]
        def put(val, rows, neg=False):
            r = cv[ncv[0] % 8]; ncv[0] += 1
            s(f'v_cvt_pk_bf16_f32 {r}, {val[0]}, {"-" if neg else ""}{val[1]}')
            return (r, rows)
        def flush(lst):
            for r, rows in lst:
                for R in rows: s(f'ds_write_addtid_b32 {r} offset:{R * 272}')
        for u in range(2):
            for n in range(6):
                s(f'v_lshlrev_b32 {P[n]}, 16, {self.par[n]}' if u == 0 else f'v_and_b32 {P[n]}, 0xffff0000, {self.par[n]}')
            A = P.sub(0, 2); B = P.sub(2, 2); C = P.sub(4, 2)
            s(f'''v_pk_mul_f32 {A}, {A}, {dt}
            v_pk_mul_f32 {B}, {B}, {dt}
            v_mul_f32 {A[0]}, {f2h(LOG2E)}, {A[0]}
            v_mul_f32 {A[1]}, 0.15915494, {A[1]}
            v_mul_f32 {tmp[0]}, 0x41000000, {A[0]}
            v_mul_f32 {tmp[1]}, 0x41000000, {A[1]}
            v_rndne_f32 {tmp[2]}, {A[1]}
            v_rndne_f32 {tmp[3]}, {tmp[1]}
            v_exp_f32 {tmp[4]}, {tmp[0]}
            v_sub_f32 {tmp[1]}, {tmp[1]}, {tmp[3]}
            v_sub_f32 {A[1]}, {A[1]}, {tmp[2]}
            v_cos_f32 {y1[0]}, {tmp[1]}
            v_sin_f32 {y1[1]}, {tmp[1]}
            v_exp_f32 {tmp[6]}, {A[0]}
            v_cos_f32 {z[0]}, {A[1]}
            v_sin_f32 {z[1]}, {A[1]}
            v_pk_mul_f32 {y1}, {y1}, {tmp.sub(4, 2)} op_sel_hi:[1,0]
            v_pk_mul_f32 {z}, {z}, {tmp.sub(6, 2)} op_sel_hi:[1,0]
            v_mov_b32 {cv[7]}, 0x3f80
            ds_write_addtid_b32 {cv[7]} offset:0
            ''')
            ncv[0] = 0
            cc = [c.sub(2*n, 2) for n in range(4)]
            XX = [X.sub(2*n, 2) for n in range(9)]
            self.cmul_batch(s, [(cc[2], y1, y1), (XX[0], C, B), (z2, z, z)], tmp)
            self.cmul_batch(s, [(cc[3], cc[2], y1), (y4, cc[2], cc[2]), (XX[1], XX[0], z), (z4, z2, z2), (XX[8], XX[0], y1)], tmp)
            flush([put(y1, [1]), put(cc[2], [2]), put(cc[3], [3]), put(y4, [4])])
            self.cmul_batch(s, [(cc[1], y1, y4), (cc[2], cc[2], y4), (cc[3], cc[3], y4), (cc[0], y4, y4)], tmp)
            for q0 in range(5, 32, 4):
                lst = [put(cc[1], [q0]), put(cc[2], [q0 + 1]), put(cc[3], [q0 + 2])]
                if q0 + 3 < 32: lst.append(put(cc[0], [q0 + 3]))
                flush(lst)
                if q0 + 4 < 32:
                    self.cmul_batch(s, [(cc[n], cc[n], y4) for n in (1, 2, 3, 0)], tmp)
            Vv = cc[0]
            for st in range(8): s(f'ds_read_b128 {Yf.sub(4*st, 4)}, {af} offset:{32 * st}')
            self.cmul_batch(s, [(XX[2], XX[0], z2), (XX[3], XX[1], z2), (XX[4], XX[0], z4), (XX[5], XX[1], z4)], tmp)
            flush([put(XX[n], [n], True) for n in (0, 1, 2, 3)])
            self.cmul_batch(s, [(XX[6], XX[2], z4), (XX[7], XX[3], z4)], tmp)
            flush([put(XX[n], [n], True) for n in (4, 5, 6, 7)])
            self.cmul_batch(s, [(XX[n], XX[n], Vv) for n in (0, 4, 8, 2, 6)], tmp)
            flush([put(XX[0], [8], True), put(XX[4], [10, 12], True), put(XX[8], [14], True), put(XX[2], [9], True), put(XX[6], [13], True)])
            for h in range(2):
                self.cmul_batch(s, [(XX[n], XX[n], Vv) for n in (0, 8, 4)], tmp)
                flush([put(XX[0], [16 + 4*h], True), put(XX[8], [18 + 4*h], True), put(XX[4], [17 + 4*h], True)])
            for h in range(4):
                self.cmul_batch(s, [(XX[n], XX[n], Vv) for n in (0, 8)], tmp)
                flush([put(XX[0], [24 + 2*h], True), put(XX[8], [25 + 2*h], True)])
            for st in range(8): s(f'ds_read_b128 {Xf.sub(4*st, 4)}, {af} offset:{32 * st}')
            for st in range(8):
                s(f'v_mfma_f32_32x32x16_bf16 {acc}, {Xf.sub(4*st, 4)}, {Yf.sub(4*st, 4)}, {acc if (u or st) else 0}')
        V.free(P, z, y1, y4, vv, z2, z4, c, X, Xf, self.par, dt)
        keep = Yf.sub(0, 8); send = Yf.sub(8, 8); got = Yf.sub(16, 8); o = Yf.sub(24, 8)
        aw_ = V.alloc(); ar_ = V.alloc(); kq = V.alloc()
        s(f'''v_add_u32 {aw_}, {sSC}, {self.l16}
        s_xor_b32 {sT}, {self.sW}, 1
        s_mul_i32 {sT}, {sT}, 8704
        s_add_u32 {sT}, {sT}, {L_S}
        v_add_u32 {ar_}, {sT}, {self.l16}
        s_mul_i32 {sT}, {self.sRG}, 4160
        s_add_u32 {sT}, {sT}, {L_K + 64}
        v_and_b32 {t}, 31, {l}
        v_lshl_add_u32 {kq}, {t}, 4, {sT}''')
        s.atom(f'''s_cmp_eq_u32 {self.sCG}, 0
        s_cselect_b64 vcc, -1, 0''')
        for n in range(8): s(f'v_cndmask_b32 {send[n]}, {acc[n]}, {acc[8 + n]}, vcc')
        s(f'''ds_write_b128 {aw_}, {send.sub(0, 4)}
        ds_write_b128 {aw_}, {send.sub(4, 4)} offset:1024''')
        for n in range(8): s(f'v_cndmask_b32 {keep[n]}, {acc[8 + n]}, {acc[n]}, vcc')
        s(f'''@waitlg
        s_barrier
        ds_read_b128 {got.sub(0, 4)}, {ar_}
        ds_read_b128 {got.sub(4, 4)}, {ar_} offset:1024''')
        for n in range(4): s(f'v_pk_add_f32 {keep.sub(2*n, 2)}, {keep.sub(2*n, 2)}, {got.sub(2*n, 2)}')
        L1 = self.lab('k1'); L2 = self.lab('k2')
        s.atom(f'''s_cmp_eq_u32 {self.sCG}, 0
        s_cbranch_scc0 {L1}
        v_cmp_eq_u32 vcc, 0, {l}
        v_mov_b32 {t}, {self.sDS}
        v_lshl_add_u32 {kq}, {hl}, 3, {kq}
        v_cndmask_b32 {t}, 0, {t}, vcc
        v_add_f32 {keep[0]}, {keep[0]}, {t}
        v_cvt_pk_bf16_f32 {o[0]}, {keep[0]}, {keep[1]}
        v_cvt_pk_bf16_f32 {o[1]}, {keep[2]}, {keep[3]}
        v_cvt_pk_bf16_f32 {o[2]}, {keep[4]}, {keep[4]}
        v_cvt_pk_bf16_f32 {o[3]}, {keep[5]}, {keep[6]}
        ds_write_b64 {kq}, {o.sub(0, 2)}
        ds_write_b64 {kq}, {o.sub(2, 2)} offset:512
        v_mov_b32 {o[4]}, 0
        v_and_b32 {t}, 15, {l}
        v_lshl_add_u32 {t}, {t}, 2, {sT}
        v_subrev_u32 {t}, 64, {t}
        ds_write_b32 {t}, {o[4]}
        s_branch {L2}
        {L1}:
        v_and_b32 {t}, 1, {l}
        v_cmp_eq_u32 vcc, 0, {t}
        v_lshl_add_u32 {t}, {hl}, 9, {kq}
        v_lshl_add_u32 {kq}, {hl}, 10, {kq}
        v_cvt_pk_bf16_f32 {o[0]}, {keep[0]}, {keep[0]}
        v_cvt_pk_bf16_f32 {o[1]}, {keep[0]}, {keep[1]}
        v_cvt_pk_bf16_f32 {o[2]}, {keep[1]}, {keep[1]}
        v_cvt_pk_bf16_f32 {o[3]}, {keep[2]}, {keep[2]}
        ds_write_b128 {t}, {o.sub(0, 4)} offset:1024
        v_cndmask_b32 {keep[0]}, {keep[5]}, {keep[4]}, vcc
        v_cndmask_b32 {keep[1]}, {keep[7]}, {keep[6]}, vcc
        v_cvt_pk_bf16_f32 {o[4]}, {keep[4]}, {keep[4]}
        v_cvt_pk_bf16_f32 {o[5]}, {keep[4]}, {keep[4]}
        v_cvt_pk_bf16_f32 {o[6]}, {keep[0]}, {keep[5]}
        v_cvt_pk_bf16_f32 {o[7]}, {keep[5]}, {keep[5]}
        ds_write_b128 {kq}, {o.sub(4, 4)} offset:2048
        v_cvt_pk_bf16_f32 {got[0]}, {keep[6]}, {keep[6]}
        v_cvt_pk_bf16_f32 {got[1]}, {keep[6]}, {keep[6]}
        v_cvt_pk_bf16_f32 {got[2]}, {keep[1]}, {keep[7]}
        v_cvt_pk_bf16_f32 {got[3]}, {keep[7]}, {keep[7]}
        ds_write_b128 {kq}, {got.sub(0, 4)} offset:2560
        {L2}:
        s_waitcnt lgkmcnt(0)''')
        V.free(tmp, cv, Yf, acc, af, t, hl, aw_, ar_, kq); S.free(sSC)
        return s

    def g1_reads(self, p, kk):
        s = Stream(); c, ks = divmod(kk, 4)
        wit = 2 * c + 1 if p == 0 else 14 + c
        w, off = win(slot(wit))
        buf = self.Wf[kk % len(self.Wf)]
        def wr(mat):
            for t in range(2):
                s(f'ds_read_b64_tr_b16 {buf.sub(4*mat + 2*t, 2)}, {self.aw[w]} offset:{off + mat*8192 + ks*2048 + t*512}')
        def xr(rt):
            if p == 0:
                wx, offx = win(slot(2 * c))
                s(f'ds_read_b128 {self.Xr.sub(8*kk + 4*rt, 4)}, {self.ax[wx][ks]} offset:{offx + rt*4096}')
        wr(0); xr(0); wr(1); xr(1)
        return s
    def g1_sync(self, p, c):
        s = Stream()
        its = [2*c, 2*c + 1] if p == 0 else [14 + c]
        s('@waitlg\n@waitvm ' + ' '.join(f'it{i}' for i in its) + '\ns_barrier')
        return s
    def g1_refill(self, p, c):
        if p == 0: its = [7] if c == 0 else [2*c + 6, 2*c + 7]
        elif c == 0: its = [20, 21]
        else: its = [21 + c]
        return [self.dma(i) for i in its]
    def gemm1(self):
        V = self.V; A = self.A
        self.Xr = A.alloc(224, 4); self.Wf = [A.alloc(8, 4), A.alloc(8, 4)]
        self.acc = [[V.alloc(16, 4) for _ in range(4)] for p in range(2)]
        pre = Stream(); pre.add(self.g1_sync(0, 0)); pre.add(self.g1_reads(0, 0))
        out = []
        pend = self.g1_refill(0, 0)
        for p in range(2):
            s = Stream()
            for kk in range(28):
                c, ks = divmod(kk, 4)
                nxt = (p, kk + 1) if kk < 27 else ((1, 0) if p == 0 else None)
                buf = self.Wf[kk % len(self.Wf)]
                def mf(n):
                    rt, mat = divmod(n, 2); a = self.acc[p][n]
                    s(f'v_mfma_f32_32x32x16_bf16 {a}, {buf.sub(4*mat, 4)}, {self.Xr.sub(8*kk + 4*rt, 4)}, {a if kk else 0}')
                rd = self.g1_reads(*nxt) if nxt else Stream()
                if ks == 3:
                    mf(0)
                    if nxt:
                        s.add(self.g1_sync(nxt[0], nxt[1] // 4)); pend = pend + self.g1_refill(nxt[0], nxt[1] // 4)
                    h = (len(rd) + 1) // 2
                    s.add(rd[:h]); mf(1); s.add(rd[h:]); mf(2); mf(3)
                else:
                    h = (len(rd) + 1) // 2
                    mf(0); s.add(rd[:h]); mf(1); s.add(rd[h:]); mf(2)
                    if pend: s.add(pend.pop(0))
                    mf(3)
            out.append(s)
        assert not pend
        return pre, out[0], out[1]

    def epi(self, p):
        s = Stream(); V = self.V; S = self.S
        if p == 0:
            self.c1 = V.alloc(); self.sC0 = S.alloc(); self.sH = S.alloc(); self.sFH = S.alloc()
            c0 = -2 * 0.7978845608028654 * LOG2E
            s(f'''v_mov_b32 {self.c1}, {f2h(c0 * 0.044715)}
            s_mov_b32 {self.sC0}, {f2h(c0)}''')
            s.atom(f'''s_lshl_b32 {self.sH}, {self.sRB}, 1
            s_add_u32 {self.sH}, {self.sH}, {self.sRG}
            s_mul_i32 {self.sH}, {self.sH}, 28
            s_add_u32 {self.sH}, {self.sH}, {self.sCB}
            s_lshl_b32 {self.sH}, {self.sH}, 1
            s_add_u32 {self.sH}, {self.sH}, {self.sCG}
            s_lshl_b32 {self.sFH}, {self.sH}, 7
            s_add_u32 {self.sFH}, {self.sFH}, {FHOFF}
            s_lshl_b32 {self.sH}, {self.sH}, 12''')
        else:
            s(f's_add_u32 {self.sH}, {self.sH}, {28 * 4096}')
        t = V.alloc(8); o = [V.alloc(4, 2), V.alloc(4, 2)]
        nb = 4
        for rt in range(2):
            G = self.acc[p][2*rt]; U = self.acc[p][2*rt + 1]
            for b in range(0, 16, nb):
                R = range(b, b + nb); T = lambda r: t[(r % 8)]
                for r in R: s(f'v_mul_f32 {T(r)}, {G[r]}, {G[r]}')
                for r in R: s(f'v_fma_f32 {T(r)}, {T(r)}, {self.c1}, {self.sC0}')
                for r in R: s(f'v_mul_f32 {T(r)}, {G[r]}, {T(r)}')
                for r in R:
                    s(f'v_exp_f32 {T(r)}, {T(r)}')
                    s(f'v_mul_f32 {U[r]}, {G[r]}, {U[r]}')
                for r in R: s(f'v_add_f32 {T(r)}, 1.0, {T(r)}')
                for r in R: s(f'v_rcp_f32 {T(r)}, {T(r)}')
                for r in R: s(f'v_mul_f32 {U[r]}, {U[r]}, {T(r)}')
                fr = b // 8
                for r in range(b, b + nb, 2): s(f'v_cvt_pk_bf16_f32 {o[fr][(r % 8) // 2]}, {U[r]}, {U[r + 1]}')
                if (b + nb) % 8 == 0:
                    s(f'buffer_store_dwordx4 {o[fr]}, {self.l16}, s[52:55], {self.sH} offen offset:{(rt*2 + fr) * 1024} sc1', tag=f'hst{p}')
        V.free(t, *o)
        return s
    def hflag(self, p):
        s = Stream()
        s(f'@waitvm hst{p}')
        s.atom(f'''s_mov_b64 exec, 1
        buffer_store_dword {self.one}, {self.l16}, s[52:55], {self.sFH} offen offset:{p * 28 * 128} sc1
        s_mov_b64 exec, -1''')
        return s

    def dbg_load(self, which):
        s = Stream(); V = self.V
        if which == 0:
            self.one = V.alloc(); self.fl = V.alloc(); self.fa = V.alloc()
            s(f'''v_mov_b32 {self.one}, 1
            v_and_b32 {self.fa}, 31, {self.lane}
            v_lshlrev_b32 {self.fa}, 2, {self.fa}''')
            self.dbgld = f'global_load_dword {self.fl}, {self.fa}, s[34:35] sc1'
        else:
            s(f'''s_lshl_b32 {self.sT2}, {self.sR64}, 2
            v_mov_b32 {self.fa}, {self.sT2}''')
            self.dbgld = f'global_load_dword {self.fl}, {self.fa}, s[34:35] offset:128 sc1'
        s(self.dbgld)
        return s
    def u_fetch(self):
        s = Stream(); V = self.V
        self.poll_check(s, self.dbgld, self.fl)
        self.ub = V.alloc(8, 2)
        s.atom(f'''s_lshl_b32 {self.sT2}, {self.sM}, 2
        s_add_u32 {self.sT2}, {self.sT2}, {self.sW}
        s_lshl_b32 {self.sT2}, {self.sT2}, 11
        s_add_u32 {self.sT2}, {self.sT2}, {UOFF}
        buffer_load_dwordx4 {self.ub.sub(0, 4)}, {self.l16}, s[52:55], {self.sT2} offen sc1
        buffer_load_dwordx4 {self.ub.sub(4, 4)}, {self.l16}, s[52:55], {self.sT2} offen offset:1024 sc1''')
        return s
    def u_put(self):
        s = Stream(); V = self.V
        a = V.alloc(); z = V.alloc(4, 2)
        s.atom(f'''s_mul_i32 {self.sT2}, {self.sRG}, 5120
        s_add_u32 {self.sT2}, {self.sT2}, {L_U}
        v_add_u32 {a}, {self.sT2}, {self.l16}''')
        for n in range(4): s(f'v_mov_b32 {z[n]}, 0')
        s(f'ds_write_b128 {a}, {z}')
        s.atom(f'''s_lshl_b32 {self.sT2}, {self.sCG}, 11
        v_add_u32 {a}, {self.sT2}, {a}''')
        s(f'''ds_write_b128 {a}, {self.ub.sub(0, 4)} offset:1024
        ds_write_b128 {a}, {self.ub.sub(4, 4)} offset:2048''')
        s.atom(f'''s_mul_i32 {self.sT2}, {self.sRG}, 2064
        s_add_u32 {self.sT2}, {self.sT2}, {L_C}
        v_mov_b32 {a}, {self.sT2}''')
        s(f'ds_write_b128 {a}, {z}')
        V.free(a, z, self.ub)
        return s

    def conv(self):
        s = Stream(); V = self.V
        self.Z = [V.alloc(16, 4) for _ in range(4)]
        F = self.cF = [V.alloc(32, 4), V.alloc(32, 4)]
        def reads(r):
            o = Stream(); b = F[r % 2]
            for n in range(4):
                c = r + 8 * n
                for t in range(2):
                    o(f'ds_read_b64_tr_b16 {b.sub(4*n + 2*t, 2)}, {self.ak} offset:{128*c + 32*(1 - t)}')
                o(f'ds_read_b128 {b.sub(16 + 4*n, 4)}, {self.au} offset:{(16*n + 14 - 2*r) * 64}')
            return o
        s.add(reads(0))
        order = [(0, 0), (0, 1), (1, 0), (0, 2), (1, 1), (2, 0), (0, 3), (1, 2), (2, 1), (3, 0)]
        for r in range(8):
            nx = reads(r + 1) if r < 7 else Stream()
            b = F[r % 2]; seen = set()
            for n, (i, d) in enumerate(order):
                z = self.Z[i + d]
                first = (r == 0 and (i + d) not in seen); seen.add(i + d)
                s(f'v_mfma_f32_32x32x16_bf16 {z}, {b.sub(4*i, 4)}, {b.sub(16 + 4*d, 4)}, {0 if first else z}')
                s.add(nx[2*n:2*n + 2])
        V.free(*F)
        return s
    def convpost(self):
        s = Stream(); V = self.V; Z = self.Z
        ex = V.alloc(4, 2); ex2 = V.alloc()
        M = 'row_mask:0xf bank_mask:'
        def level(Ta, Tb, na, sh, d, m0, m1, extra):
            T = Ta + extra
            for r in range(na + d - 1, d - 1, -1):
                if r < na: s(f'v_add_f32_dpp {T[r]}, {Ta[r - d]}, {T[r]} row_shl:{sh} {M}{m0}')
                else: s(f'v_mov_b32_dpp {T[r]}, {Ta[r - d]} row_shl:{sh} {M}{m0}')
            for r in range(na + d):
                if r < d: s(f'v_mov_b32_dpp {T[r]}, {Tb[r]} row_shr:{sh} {M}{m1}')
                elif r < na: s(f'v_add_f32_dpp {T[r]}, {Tb[r]}, {Tb[r - d]} row_shr:{sh} {M}{m1}')
                else: s(f'v_mov_b32_dpp {T[r]}, {Tb[r - d]} quad_perm:[0,1,2,3] {M}{m1}')
            return T
        L = lambda z: [z[r] for r in range(16)]
        T01 = level(L(Z[0]), L(Z[1]), 16, 4, 1, '0x5', '0xa', [ex[0]])
        T23 = level(L(Z[2]), L(Z[3]), 16, 4, 1, '0x5', '0xa', [ex2])
        Y = level(T01, T23, 17, 8, 2, '0x3', '0xc', [ex[1], ex[2]])
        ac = V.alloc()
        s.atom(f'''s_mul_i32 {self.sT2}, {self.sRG}, 2064
        s_add_u32 {self.sT2}, {self.sT2}, {L_C}
        v_lshl_add_u32 {ac}, {self.vg}, 4, {self.sT2}''')
        s(f'ds_write_b128 {ac}, {ex} offset:16', tag='carry')
        s2 = Stream()
        o = Z[1]
        s2(f'ds_read_b128 {ex}, {ac}')
        for q in range(2, 8): s2(f'v_cvt_pk_bf16_f32 {o[q]}, {Y[2*q]}, {Y[2*q + 1]}')
        s2.atom(f'''s_lshl_b32 {self.sT2}, {self.sM}, 1
        s_add_u32 {self.sT2}, {self.sT2}, {self.sRG}
        s_lshl_b32 {self.sT2}, {self.sT2}, 12
        s_add_u32 {self.sT2}, {self.sT2}, {AOFF}
        v_lshl_add_u32 {ac}, {self.vg}, 5, {self.sT2}''')
        for r in range(3): s2(f'v_add_f32 {Y[r]}, {Y[r]}, {ex[r]}')
        for q in range(2): s2(f'v_cvt_pk_bf16_f32 {o[q]}, {Y[2*q]}, {Y[2*q + 1]}')
        s2(f'''buffer_store_dwordx4 {o.sub(0, 4)}, {ac}, s[52:55], 0 offen sc1
        buffer_store_dwordx4 {o.sub(4, 4)}, {ac}, s[52:55], 0 offen offset:16 sc1''', tag='ast')
        V.free(ex, ex2, ac, *Z)
        return s, s2
    def aflag(self):
        s = Stream()
        s('@waitvm ast')
        s.atom(f'''s_lshl_b32 {self.sT2}, {self.sM}, 2
        s_add_u32 {self.sT2}, {self.sT2}, {self.sW}
        s_lshl_b32 {self.sT2}, {self.sT2}, 7
        s_add_u32 {self.sT2}, {self.sT2}, {FAOFF}
        s_mov_b64 exec, 1
        buffer_store_dword {self.one}, {self.l16}, s[52:55], {self.sT2} offen sc1
        s_mov_b64 exec, -1''')
        return s

    def hpoll_load(self, p):
        s = Stream(); S = self.S
        if p == 0:
            self.sHC = S.alloc(); self.fh = self.V.alloc(); self.hv = self.V.alloc(2)
            s.atom(f'''s_mul_i32 {self.sHC}, {self.sR64}, 56
            s_mul_i32 {self.sT2}, {self.sW}, 7
            s_add_u32 {self.sHC}, {self.sHC}, {self.sT2}
            s_lshl_b32 {self.sT2}, {self.sHC}, 7
            s_add_u32 {self.sT2}, {self.sT2}, {FHOFF}
            v_min_u32 {self.fh}, 6, {self.lane}
            v_lshl_add_u32 {self.fh}, {self.fh}, 7, {self.sT2}
            s_lshl_b32 {self.sHC}, {self.sHC}, 12
            s_lshl_b32 {self.sT2}, {self.sRG}, 11
            v_add_u32 {self.hv[0]}, {self.sT2}, {self.l16}
            v_xor_b32 {self.hv[1]}, 0x800, {self.hv[0]}''')
        self.hld = f'buffer_load_dword {self.fl}, {self.fh}, s[52:55], 0 offen offset:{p * 28 * 128} sc1'
        s(self.hld)
        return s
    def h_loads(self, p):
        s = Stream()
        self.poll_check(s, self.hld, self.fl)
        for n in range(7):
            txt = f's_add_u32 {self.sT2}, {self.sHC}, {(p * 28 + n) * 4096}\n'
            for fr in range(2):
                for rt in range(2):
                    txt += f'buffer_load_dwordx4 {self.Hf.sub(16*n + 8*fr + 4*rt, 4)}, {self.hv[rt]}, s[52:55], {self.sT2} offen offset:{fr * 1024} sc1\n'
            s.atom(txt)
        return s
    def d_reads(self, p, n, dst):
        s = Stream(); it = 21 + 7*p + n
        w, off = win(slot(it))
        s(f'@waitvm it{it}')
        for fr in range(2):
            for dt in range(2):
                for t in range(2):
                    s(f'ds_read_b64_tr_b16 {dst.sub(8*fr + 4*dt + 2*t, 2)}, {self.ad[dt][w]} offset:{off + fr*2048 + t*1024}', tag=f'dr{it}')
        return s
    def g2_mfma(self, p, n, Dn):
        s = Stream()
        for fr in range(2):
            for sl in range(4):
                rt, dt = divmod(sl, 2); a = self.acc2[sl]
                s(f'v_mfma_f32_32x32x16_bf16 {a}, {Dn.sub(8*fr + 4*dt, 4)}, {self.Hf.sub(16*n + 8*fr + 4*rt, 4)}, {a if (p or n or fr) else 0}')
        return s

    def a_poll_load(self):
        s = Stream()
        s.atom(f'''s_lshl_b32 {self.sT2}, {self.sCOL}, 1
        s_add_u32 {self.sT2}, {self.sT2}, {self.sCG}
        s_lshl_b32 {self.sT2}, {self.sT2}, 6
        s_bfe_u32 {self.sT}, {self.sR64}, 0x10002
        s_add_u32 {self.sT2}, {self.sT2}, {self.sT}
        s_lshl_b32 {self.sT2}, {self.sT2}, 7
        s_add_u32 {self.sT2}, {self.sT2}, {FAOFF}
        v_and_b32 {self.fa}, 31, {self.lane}
        v_lshl_add_u32 {self.fa}, {self.fa}, 8, {self.sT2}''')
        self.ald = f'buffer_load_dword {self.fl}, {self.fa}, s[52:55], 0 offen sc1'
        s(self.ald)
        return s
    def g_fetch(self):
        s = Stream(); V = self.V
        self.poll_check(s, self.dbgld, self.fl)
        self.gg = V.alloc(2); self.row = V.alloc(); t = V.alloc()
        s.atom(f'''s_lshl_b32 {self.sT2}, {self.sR64}, 1
        s_add_u32 {self.sT2}, {self.sT2}, {self.sRG}
        s_lshl_b32 {self.sT2}, {self.sT2}, 5
        v_and_b32 {self.row}, 31, {self.lane}
        v_add_u32 {self.row}, {self.sT2}, {self.row}
        v_lshlrev_b32 {t}, 3, {self.row}
        s_mov_b32 {self.sT2}, {GOFF}
        buffer_load_dwordx2 {self.gg}, {t}, s[52:55], {self.sT2} offen sc1''')
        V.free(t)
        return s
    def a_fetch(self):
        s = Stream(); V = self.V; l = self.lane
        self.poll_check(s, self.ald, self.fl)
        self.ab = V.alloc(8, 2); t = V.alloc(); t2 = V.alloc()
        s.atom(f'''s_lshl_b32 {self.sT2}, {self.sCOL}, 1
        s_add_u32 {self.sT2}, {self.sT2}, {self.sCG}
        s_lshl_b32 {self.sT2}, {self.sT2}, 17
        s_lshl_b32 {self.sT}, {self.sR64}, 1
        s_add_u32 {self.sT}, {self.sT}, {self.sRG}
        s_lshl_b32 {self.sT}, {self.sT}, 6
        s_add_u32 {self.sT2}, {self.sT2}, {self.sT}
        s_add_u32 {self.sT2}, {self.sT2}, {AOFF}
        v_lshrrev_b32 {t}, 2, {l}
        v_lshlrev_b32 {t}, 12, {t}
        v_and_b32 {t2}, 3, {l}
        v_lshl_add_u32 {t}, {t2}, 4, {t}
        buffer_load_dwordx4 {self.ab.sub(0, 4)}, {t}, s[52:55], {self.sT2} offen sc1
        s_add_u32 {self.sT2}, {self.sT2}, 0x10000
        buffer_load_dwordx4 {self.ab.sub(4, 4)}, {t}, s[52:55], {self.sT2} offen sc1''')
        V.free(t, t2)
        return s
    def a_prep(self):
        s = Stream(); V = self.V; l = self.lane
        a = V.alloc(); t = V.alloc(); self.ga = V.alloc(16, 2)
        s.atom(f'''s_lshl_b32 {self.sT2}, {self.sW}, 11
        s_add_u32 {self.sT2}, {self.sT2}, {L_AB}
        v_add_u32 {a}, {self.sT2}, {self.l16}
        ds_write_b128 {a}, {self.ab.sub(0, 4)}
        ds_write_b128 {a}, {self.ab.sub(4, 4)} offset:1024
        v_lshrrev_b32 {a}, 5, {l}
        v_lshl_add_u32 {a}, {a}, 10, {self.sT2}''')
        s(f'''v_bfe_u32 {t}, {l}, 2, 2
        v_lshl_add_u32 {a}, {t}, 6, {a}
        v_bfe_u32 {t}, {l}, 4, 1
        v_lshl_add_u32 {a}, {t}, 5, {a}
        v_and_b32 {t}, 3, {l}
        v_lshl_add_u32 {a}, {t}, 3, {a}''')
        for j in range(4): s(f'ds_read_b64_tr_b16 {self.ab.sub(2*j, 2)}, {a} offset:{j * 256}')
        for q in range(8):
            s(f'''v_lshlrev_b32 {self.ga[2*q]}, 16, {self.ab[q]}
            v_and_b32 {self.ga[2*q + 1]}, 0xffff0000, {self.ab[q]}''')
        for r in range(16): s(f'v_mul_f32 {self.ga[r]}, {self.gg[0]}, {self.ga[r]}')
        V.free(a, t, self.ab)
        return s
    def final(self):
        s = Stream(); V = self.V; l = self.lane
        a = V.alloc(); ar = V.alloc(3, 1); o = V.alloc(8, 2); t = V.alloc()
        base = [slot(28 + k) for k in range(4)]
        assert base[2] - base[1] == 16384
        pre = Stream()
        pre.atom(f'''v_add_u32 {a}, {self.sLW}, {self.l16}''')
        for k in (1, 2, 3):
            pre.atom(f'''v_xor_b32 {ar[k-1]}, {k * 4096}, {a}
            v_add_u32 {ar[k-1]}, {base[k]}, {ar[k-1]}''')
        aw3 = V.alloc(3, 1)
        for k in (1, 2, 3): pre(f'v_add_u32 {aw3[k-1]}, {base[k]}, {a}')
        pre.atom(f'''s_lshl_b32 {self.sT2}, {self.sCOL}, 1
        s_add_u32 {self.sT2}, {self.sT2}, {self.sCG}
        s_lshl_b32 {self.sT2}, {self.sT2}, 6
        v_mul_u32_u24 {a}, 896, {self.row}
        v_add_u32 {a}, {self.sT2}, {a}
        v_lshrrev_b32 {t}, 5, {l}
        v_lshl_add_u32 {a}, {t}, 5, {a}''')
        for k in (1, 2, 3):
            for q in range(4): s(f'ds_write_b128 {aw3[k-1]}, {self.acc2[k].sub(4*q, 4)} offset:{q * 1024}')
        s('@waitlg\ns_barrier')
        for q in range(4):
            for k in (1, 2, 3): s(f'ds_read_b128 {self.acc2[k].sub(4*q, 4)}, {ar[k-1]} offset:{q * 1024}')
        b = self.acc2[0]
        for q in range(4):
            for h in range(2):
                r = 4*q + 2*h
                s(f'v_pk_add_f32 {b.sub(r, 2)}, {b.sub(r, 2)}, {self.acc2[1].sub(r, 2)}')
                s(f'v_pk_add_f32 {self.acc2[2].sub(r, 2)}, {self.acc2[2].sub(r, 2)}, {self.acc2[3].sub(r, 2)}')
            for h in range(2):
                r = 4*q + 2*h
                s(f'v_pk_add_f32 {b.sub(r, 2)}, {b.sub(r, 2)}, {self.acc2[2].sub(r, 2)}')
            for h in range(2):
                r = 4*q + 2*h
                s(f'v_pk_fma_f32 {b.sub(r, 2)}, {b.sub(r, 2)}, {self.gg}, {self.ga.sub(r, 2)} op_sel:[0,1,0] op_sel_hi:[1,1,1]')
            for h in range(2):
                r = 4*q + 2*h
                s(f'v_cvt_pk_bf16_f32 {o[r // 2]}, {b[r]}, {b[r + 1]}')
            if q % 2 == 1:
                s(f'buffer_store_dwordx4 {o.sub(4*(q // 2), 4)}, {a}, s[56:59], 0 offen offset:{16 * (q // 2)}')
        V.free(a, ar, o, t, aw3)
        return pre, s

    def helper(self):
        s = Stream(); l = self.lane; W = self.sW
        V = Regs('v', 256, 8); T = 's3'; T2 = 's95'
        s('@forget\nL_helper:')
        r8 = V.alloc(); c8 = V.alloc(); t = V.alloc(); t2 = V.alloc(); vx = V.alloc(2); zero = V.alloc(); fo = V.alloc()
        s(f'''
        v_lshrrev_b32 {r8}, 3, {l}
        v_and_b32 {c8}, 7, {l}
        v_lshrrev_b32 {t2}, 4, {l}
        s_lshl_b32 {T}, s2, 2
        s_add_u32 {T}, {T}, {W}
        s_mul_i32 {T}, {T}, {16*896}
        v_mul_u32_u24 {t}, 896, {r8}
        v_add_u32 {t}, {T}, {t}
        v_xor_b32 {t2}, {c8}, {t2}
        v_lshl_add_u32 {vx[0]}, {t2}, 4, {t}
        v_xor_b32 {t2}, 4, {t2}
        v_lshl_add_u32 {vx[1]}, {t2}, 4, {t}
        v_add_u32 {vx[1]}, {8*896 - 1024}, {vx[1]}
        v_mov_b32 {zero}, 0
        s_mul_i32 {T}, s2, {84*128}
        s_add_u32 {T}, {T}, {FHOFF}
        v_lshl_add_u32 {fo}, v0, 7, {T}
        v_mov_b32 {t}, 0x7fffff00
        v_cmp_gt_u32 vcc, 84, v0
        v_cndmask_b32 {fo}, {t}, {fo}, vcc
        s_waitcnt lgkmcnt(0)''')
        self.srd(s, 40, 's4', 's5', 2048 * 896)
        self.srd(s, 52, 's36', 's37', WSB)
        s(f's_lshl_b32 {T2}, {W}, 11')
        for c in range(7):
            s(f'''s_add_u32 m0, {T2}, {c * 8192}
            s_mov_b32 {T}, {c * 128}
            buffer_load_dwordx4 {vx[0]}, s[40:43], {T} offen lds
            buffer_load_dwordx4 {vx[1]}, s[40:43], {T} offen offset:1024 lds''', tag='hx')
        s(f'buffer_store_dword {zero}, {fo}, s[52:55], 0 offen sc1')
        xs = V.alloc(56, 2); gs = V.alloc(56, 2); go = V.alloc(); xo = V.alloc()
        s(f'''v_and_b32 {go}, 3, v0
        v_lshlrev_b32 {go}, 4, {go}
        v_lshrrev_b32 {t}, 2, v0
        v_mul_u32_u24 {xo}, 896, {t}
        v_add_u32 {xo}, {xo}, {go}
        s_mul_i32 {T}, s2, {64*896}''')
        for j in range(14):
            s(f'buffer_load_dwordx4 {xs.sub(4*j, 4)}, {xo}, s[40:43], {T} offen offset:{64*j}')
            s(f'global_load_dwordx4 {gs.sub(4*j, 4)}, {go}, s[30:31] offset:{64*j}')
        a = V.alloc(); uo = V.alloc(); ub = V.alloc(56, 2)
        s(f'''
        v_bfe_u32 {t}, {l}, 2, 2              ; i>>2
        v_lshrrev_b32 {t2}, 4, {l}            ; rho
        v_lshl_add_u32 {a}, {t}, 2, {t2}
        v_lshlrev_b32 {a}, 7, {a}             ; row*128
        v_lshrrev_b32 {r8}, 5, {l}
        v_lshl_add_u32 {t}, {t}, 1, {r8}      ; swz
        v_bfe_u32 {c8}, {l}, 1, 1
        s_lshl_b32 {T}, {W}, 1
        v_add_u32 {c8}, {T}, {c8}
        v_xor_b32 {t}, {t}, {c8}
        v_lshl_add_u32 {a}, {t}, 4, {a}
        v_and_b32 {t}, 1, {l}
        v_lshl_add_u32 {a}, {t}, 3, {a}
        v_and_b32 {t}, 15, {l}
        v_lshlrev_b32 {uo}, 12, {t}
        v_lshl_add_u32 {uo}, {t2}, 4, {uo}
        s_lshl_b32 {T}, {W}, 16
        s_lshl_b32 {T2}, s2, 7
        s_add_u32 {T2}, {T2}, {T}
        s_add_u32 {T2}, {T2}, {UOFF}
        @waitvm hx
        s_barrier''')
        for n in range(7):
            for A in range(2):
                for tt in range(2):
                    s(f'ds_read_b64_tr_b16 {ub.sub(8*n + 4*A + 2*tt, 2)}, {a} offset:{n*8192 + A*4096 + tt*2048}')
        for n in range(7):
            s(f's_add_u32 {T}, {T2}, {n * 64 * 4096}')
            for A in range(2):
                s(f'buffer_store_dwordx4 {ub.sub(8*n + 4*A, 4)}, {uo}, s[52:55], {T} offen offset:{64*A} sc1')
        one = V.alloc()
        s(f'''v_mov_b32 {one}, 1
        s_lshl_b32 {T}, s2, 2
        v_mov_b32 {fo}, {T}
        s_waitcnt vmcnt(0)
        s_barrier''')
        s.atom(f'''s_cmp_eq_u32 {W}, 0
        s_cbranch_scc0 L_h1
        s_mov_b64 exec, 1
        global_store_dword {fo}, {one}, s[34:35] sc1
        s_mov_b64 exec, -1
        L_h1:''')
        acc = V.alloc(2); p = V.alloc(8)
        s(f'v_mov_b32 {acc[0]}, 0\nv_mov_b32 {acc[1]}, 0')
        for j in range(0, 56, 2):
            for h in range(2):
                x, g = xs[j + h], gs[j + h]; q = p.sub(4*h, 4)
                s(f'''v_lshlrev_b32 {q[0]}, 16, {x}
                v_and_b32 {q[1]}, 0xffff0000, {x}
                v_lshlrev_b32 {q[2]}, 16, {g}
                v_and_b32 {q[3]}, 0xffff0000, {g}''')
            for h in range(2):
                q = p.sub(4*h, 4)
                s(f'v_pk_mul_f32 {q.sub(0, 2)}, {q.sub(0, 2)}, {q.sub(2, 2)}')
            for h in range(2):
                q = p.sub(4*h, 4)
                s(f'v_cvt_pk_bf16_f32 {q[2]}, {q[0]}, {q[1]}')
            for h in range(2):
                q = p.sub(4*h, 4)
                s(f'''v_lshlrev_b32 {q[0]}, 16, {q[2]}
                v_and_b32 {q[1]}, 0xffff0000, {q[2]}''')
            for h in range(2):
                q = p.sub(4*h, 4)
                s(f'v_pk_add_f32 {acc}, {acc}, {q.sub(0, 2)}')
        s(f'''v_add_f32 {acc[0]}, {acc[0]}, {acc[1]}
        v_add_f32_dpp {acc[0]}, {acc[0]}, {acc[0]} quad_perm:[1,0,3,2] row_mask:0xf bank_mask:0xf
        v_add_f32_dpp {acc[0]}, {acc[0]}, {acc[0]} quad_perm:[2,3,0,1] row_mask:0xf bank_mask:0xf
        v_cvt_pk_bf16_f32 {t}, {acc[0]}, {acc[0]}
        v_lshlrev_b32 {t}, 16, {t}
        v_mul_f32 {t}, {f2h(-LOG2E)}, {t}
        v_exp_f32 {t}, {t}
        v_add_f32 {t}, 1.0, {t}
        v_rcp_f32 {t}, {t}
        v_cvt_pk_bf16_f32 {t}, {t}, {t}
        v_lshlrev_b32 {acc[0]}, 16, {t}
        v_sub_f32 {t}, 1.0, {acc[0]}
        v_cvt_pk_bf16_f32 {t}, {t}, {t}
        v_lshlrev_b32 {acc[1]}, 16, {t}
        v_lshrrev_b32 {t}, 2, v0
        v_lshlrev_b32 {t}, 3, {t}
        s_lshl_b32 {T}, s2, 9
        s_add_u32 {T}, {T}, {GOFF}
        s_mov_b32 exec_lo, 0x11111111
        s_mov_b32 exec_hi, 0x11111111
        buffer_store_dwordx2 {acc}, {t}, s[52:55], {T} offen sc1
        s_mov_b64 exec, -1
        s_waitcnt vmcnt(0)
        s_barrier''')
        s.atom(f'''s_cmp_eq_u32 {W}, 0
        s_cbranch_scc0 L_h2
        s_mov_b64 exec, 1
        global_store_dword {fo}, {one}, s[34:35] offset:128 sc1
        s_mov_b64 exec, -1
        L_h2:''')
        if self.opt.get('stamps'):
            self.nstamp = 10; self.stamp(s); self.stamp(s, real=True)
            sv = self.V; self.V = V; self.stamp_out(s); self.V = sv
        s('s_endpgm')
        return s

    def build(self):
        V = self.V; A = self.A; o = self.opt
        m = Stream()
        m.add(self.entry()); m.add(self.prologue()); m.add(self.addrs())
        self.stamp(m)
        m.add(self.kgen())
        V.free(self.pfreg)
        self.stamp(m)
        pre, p0, p1 = self.gemm1()
        m.add(pre); m.add(p0)
        self.stamp(m)
        f1 = Stream()
        f1.add(self.dbg_load(0)); f1.add(self.epi(0)); f1.add(self.u_fetch())
        f2 = Stream(); f2.add(self.hflag(0)); f2.add(self.u_put())
        m.add(f1)
        m.add(weave(p1, f2, start=40, stop=90))
        self.stamp(m)
        V.free(*self.acc[0])
        A.free(self.Xr, *self.Wf)
        self.Hf = A.alloc(112, 4); D0 = A.alloc(112, 4); D1 = [A.alloc(16, 4), A.alloc(16, 4)]
        m('@waitlg\ns_barrier')
        m.add(self.dma(28))
        m.add(self.hpoll_load(0))
        m.add(self.epi(1))
        V.free(*self.acc[1])
        self.stamp(m)
        m.add(self.h_loads(0))
        for n in range(7):
            m.add(self.d_reads(0, n, D0.sub(16*n, 16)))
            if n < 6:
                m(f'@waitlg dr{21 + n}'); m.add(self.dma(29 + n))
        m.add(self.hflag(1))
        m.add(self.conv())
        self.stamp(m)
        c1, c2 = self.convpost()
        m.add(c1); m('@waitlg\ns_barrier'); m.add(c2)
        m.add(self.dbg_load(1))
        self.acc2 = [V.alloc(16, 4) for _ in range(4)]
        for n in range(7): m.add(self.g2_mfma(0, n, D0.sub(16*n, 16)))
        m.add(self.aflag())
        m.add(self.g_fetch())
        m.add(self.hpoll_load(1))
        self.stamp(m)
        m.add(self.h_loads(1))
        m.add(self.a_poll_load())
        m.add(self.d_reads(1, 0, D1[0]))
        for n in range(7):
            if n < 6: m.add(self.d_reads(1, n + 1, D1[(n + 1) % 2]))
            m.add(self.g2_mfma(1, n, D1[n % 2]))
        self.stamp(m)
        m.add(self.a_fetch()); m.add(self.a_prep())
        pre, fin = self.final()
        m.add(pre); m.add(fin)
        self.stamp(m); self.stamp(m, real=True)
        self.stamp_out(m)
        m('s_endpgm')
        m.add(self.cold)
        m.add(self.helper())
        m('L_end:\ns_endpgm')
        k = K(KN + '_kernel', vgpr=256, agpr=256)
        k.lines = finalize(m)
        return build([k], [(KN + '_kernel', 256, 256, 163840)])

if __name__ == '__main__':
    opt = dict(a.split('=') if '=' in a else (a, 1) for a in sys.argv[2:])
    open(sys.argv[1], 'w').write(Gen(opt).build())
```

```python
import sys
from asmlib import *
import gen as G
def mk(src, idx, mode='max', factor=10, first=128, n=14):
    s = open(src).read()
    main = KN + '_kernel'
    k = K('spin_kernel', vgpr=16)
    k(f'''s_load_dwordx2 s[4:5], s[0:1], 128
    s_cmp_ge_u32 s2, 1
    s_cbranch_scc1 L_send
    v_lshlrev_b32 v1, 7, v0
    v_add_u32 v1, {G.TOFF}, v1
    v_mov_b32 v2, -1
    v_mov_b32 v3, {0 if mode == 'max' else -1}
    s_waitcnt lgkmcnt(0)''')
    for j in range(16):
        k(f'''global_load_dword v4, v1, s[4:5]
        global_load_dword v5, v1, s[4:5] offset:{8*idx}
        s_waitcnt vmcnt(0)
        v_min_u32 v2, v2, v4''')
        if first <= j * 64 < first + n * 64: k(f'v_{mode}_u32 v3, v3, v5')
        k('v_add_u32 v1, 8192, v1')
    k(f's_mov_b32 s6, -1\ns_mov_b32 s7, {0 if mode == "max" else -1}')
    for j in range(64):
        k(f'''v_readlane_b32 s8, v2, {j}
        v_readlane_b32 s9, v3, {j}
        s_nop 1
        s_min_u32 s6, s6, s8
        s_{mode}_u32 s7, s7, s9''')
    k(f'''s_sub_u32 s7, s7, s6
    s_min_u32 s7, s7, 10000
    s_mul_i32 s7, s7, {factor}
    s_memrealtime s[10:11]
    s_waitcnt lgkmcnt(0)
    L_sp:
    s_memrealtime s[12:13]
    s_waitcnt lgkmcnt(0)
    s_sub_u32 s12, s12, s10
    s_cmp_lt_u32 s12, s7
    s_cbranch_scc1 L_sp
    L_send:
    s_endpgm''')
    line = [l for l in s.split('\n') if l.startswith('; @launch')][0]
    new = line.replace('@launch ', f'@launch kernel={main} ') + '\n; @launch kernel=spin_kernel grid=(1,1,1) block=(64,1,1) lds=0'
    s = s.replace(line, new)
    return s.replace('.section .rodata,"a"\n', k.text() + '.section .rodata,"a"\n' + k.desc())
if __name__ == '__main__':
    src = sys.argv[1]
    for a in sys.argv[2:]:
        idx, mode, f = a.split(',')
        open(f'sp_{idx}_{mode}_{f}.s', 'w').write(mk(src, int(idx), mode, int(f)))
```

```python
import re
from asmlib import KN, ARG, HEADER

TRANS = ('v_exp_f32', 'v_log_f32', 'v_rcp_f32', 'v_rsq_f32', 'v_sqrt_f32', 'v_sin_f32', 'v_cos_f32')
REG_RE = re.compile(r'^[-|]*(?:abs\()?([vas])(?:(\d+)|\[(\d+):(\d+)\])\)?\|?$')

def split_ops(s):
    out, depth, cur = [], 0, ''
    for ch in s:
        if ch == '[': depth += 1
        if ch == ']': depth -= 1
        if ch == ',' and depth == 0:
            out.append(cur.strip()); cur = ''
        else: cur += ch
    if cur.strip(): out.append(cur.strip())
    return out

def regs_of(tok):
    tok = tok.strip()
    if tok in ('vcc', 'vcc_lo', 'vcc_hi'): return ['vcc']
    if tok in ('exec',): return ['exec']
    if tok == 'm0': return ['m0']
    m = REG_RE.match(tok)
    if not m: return []
    t = m.group(1)
    if m.group(2) is not None: return [t + m.group(2)]
    return [t + str(i) for i in range(int(m.group(3)), int(m.group(4)) + 1)]

class Ins:
    __slots__ = ('text', 'op', 'kind', 'dst', 'src', 'tag', 'ops', 'mods', 'arg')
    def __init__(self, text, tag=None):
        self.text = text = text.split(';')[0].strip()
        self.tag = tag; self.dst = []; self.src = []; self.arg = None; self.ops = []; self.mods = ''
        if text.endswith(':'): self.op = 'label'; self.kind = 'label'; return
        if text.startswith('.'): self.op = text; self.kind = 'dir'; return
        if text.startswith('@'):
            p = text[1:].split(); self.op = p[0]; self.kind = 'pseudo'; self.arg = p[1:]; return
        p = text.split(None, 1)
        op = self.op = p[0]
        rest = p[1] if len(p) > 1 else ''
        ops = split_ops(rest)
        if ops:
            last = ops[-1]; depth = 0; cut = None
            for i, ch in enumerate(last):
                if ch in '[(': depth += 1
                if ch in '])': depth -= 1
                if ch == ' ' and depth == 0: cut = i; break
            if cut is not None:
                self.mods = last[cut:].strip(); ops[-1] = last[:cut]
        self.ops = ops
        R = [regs_of(o) for o in ops]
        allr = lambda a: [r for x in a for r in x]
        base = re.sub(r'_(e32|e64|dpp|sdwa)$', '', op)
        if op.startswith('v_mfma'):
            self.kind = 'mfma'; self.dst = R[0]; self.src = allr(R[1:])
        elif op.startswith('v_'):
            self.kind = 'trans' if base in TRANS else 'valu'
            if base.startswith('v_permlane') and 'swap' in base:
                self.dst = allr(R); self.src = allr(R)
            elif base in ('v_add_co_u32', 'v_sub_co_u32', 'v_addc_co_u32', 'v_subb_co_u32'):
                self.dst = R[0] + R[1]; self.src = allr(R[2:])
            else:
                self.dst = R[0]; self.src = allr(R[1:])
                if base in ('v_fmac_f32', 'v_dot2c_f32_bf16', 'v_writelane_b32') or op.endswith('_dpp') or op.endswith('_sdwa'):
                    self.src = self.src + R[0]
        elif op.startswith('ds_'):
            self.kind = 'ds'
            if op.startswith('ds_read') or op.startswith('ds_bpermute'):
                self.dst = R[0]; self.src = allr(R[1:])
                if 'd16' in op: self.src = self.src + R[0]
            else: self.src = allr(R)
            if 'addtid' in op: self.src = self.src + ['m0']
        elif op.startswith('buffer_') or op.startswith('global_'):
            self.kind = 'vmem'
            islds = (' lds' in ' ' + self.mods) or '_lds_' in op
            if islds: self.src = allr(R) + ['m0']; self.kind = 'dma'
            elif '_load' in op:
                self.dst = R[0]; self.src = allr(R[1:])
                if 'd16' in op: self.src = self.src + R[0]
            else: self.src = allr(R)
        elif op.startswith('s_load') or op in ('s_memtime', 's_memrealtime'):
            self.kind = 'smem'; self.dst = R[0]; self.src = allr(R[1:])
        elif op in ('s_waitcnt',): self.kind = 'wait'
        elif op == 's_nop': self.kind = 'nop'; self.arg = int(ops[0])
        elif op == 's_barrier': self.kind = 'barrier'
        elif op.startswith('s_cbranch') or op in ('s_branch', 's_endpgm'):
            self.kind = 'branch'
            if 'vcc' in op: self.src = ['vcc']
        elif op.startswith('s_cmp') or op in ('s_setprio', 's_sleep') or op.startswith('s_bitcmp'):
            self.kind = 'salu'; self.src = allr(R)
        elif op.startswith('s_'):
            self.kind = 'salu'; self.dst = R[0]; self.src = allr(R[1:])
            if 'saveexec' in op: self.dst = self.dst + ['exec']
        else:
            raise ValueError('unknown instr: ' + text)
    def __repr__(self): return self.text

class Stream(list):
    def __call__(self, s, tag=None):
        for l in s.strip('\n').split('\n'):
            l = l.strip()
            if not l or l.startswith(';'): continue
            self.append([Ins(l, tag)])
        return self
    def atom(self, s, tag=None):
        a = []
        for l in s.strip('\n').split('\n'):
            l = l.strip()
            if not l or l.startswith(';'): continue
            a.append(Ins(l, tag))
        self.append(a); return self
    def add(self, other):
        self.extend(other); return self
    def flat(self): return [i for a in self for i in a]

COST = dict(dsw=2, dsw128=4, vm=1, st=2)
def cost(atom):
    c = 0
    for i in atom:
        if i.kind == 'pseudo':
            if i.op in ('wait', 'waitvm', 'waitlg'): c += 1
            continue
        if i.kind in ('label', 'dir'): continue
        if i.kind == 'trans': c += 2
        elif i.kind == 'ds' and 'write' in i.op: c += COST['dsw128'] if '128' in i.op else COST['dsw']
        elif i.kind == 'vmem' and 'store' in i.op: c += COST['st']
        elif i.kind in ('vmem', 'dma'): c += COST['vm']
        else: c += 1
    return c

def weave(main, fill, budget=6, start=0, stop=None):
    idx = [n for n, a in enumerate(main) if any(i.kind == 'mfma' for i in a)]
    if stop is None: stop = len(idx)
    occ = []
    for g, n in enumerate(idx):
        e = idx[g + 1] if g + 1 < len(idx) else len(main)
        occ.append(sum(cost(a) for a in main[n + 1:e]))
    free = [max(0, budget - o) if start <= g < stop else 0 for g, o in enumerate(occ)]
    total = sum(cost(a) for a in fill); cap = sum(free)
    scale = min(1.0, total / cap) if cap else 0
    out = Stream(); fi = 0; acc = 0.0; used = 0
    g = -1
    ends = {}
    for g, n in enumerate(idx):
        ends[(idx[g + 1] if g + 1 < len(idx) else len(main)) - 1] = g
    for n, a in enumerate(main):
        out.append(a)
        if n in ends:
            g = ends[n]
            acc += free[g] * scale
            while fi < len(fill) and used + cost(fill[fi]) <= acc + 0.5:
                used += cost(fill[fi]); out.append(fill[fi]); fi += 1
    while fi < len(fill): out.append(fill[fi]); fi += 1
    return out

def insert_waits(ins):
    out = []; vm = []; lg = []
    from collections import Counter
    mem = ('vmem', 'dma', 'ds', 'smem')
    total = Counter(i.tag for i in ins if i.tag and i.kind in mem); seen = Counter()
    def emit(v=None, l=None):
        nonlocal vm, lg
        parts = []
        if v is not None and len(vm) > v:
            v = min(v, 63); parts.append(f'vmcnt({v})'); vm = vm[len(vm) - v:] if v else []
        if l is not None and len(lg) > l:
            if any(x.kind == 'smem' for x in lg): l = 0
            l = min(l, 15); parts.append(f'lgkmcnt({l})'); lg = lg[len(lg) - l:] if l else []
        if parts: out.append(Ins('s_waitcnt ' + ' '.join(parts)))
    for i in ins:
        if i.tag and i.kind in mem: seen[i.tag] += 1
        if i.kind == 'pseudo':
            if i.op in ('waitvm', 'waitlg', 'wait'):
                for t in i.arg: assert t == 'LG' or (total[t] and seen[t] == total[t]), ('wait before issue', t, seen[t], total[t])
            if i.op == 'wait':
                pv = [n for n, x in enumerate(vm) if x.tag in i.arg]
                pl = [n for n, x in enumerate(lg) if x.tag in i.arg or 'LG' in i.arg]
                emit(v=(len(vm) - 1 - max(pv)) if pv else None, l=(len(lg) - 1 - max(pl)) if pl else None)
            elif i.op == 'waitvm':
                pos = [n for n, x in enumerate(vm) if x.tag in i.arg]
                if pos: emit(v=len(vm) - 1 - max(pos))
            elif i.op == 'waitlg':
                pos = [n for n, x in enumerate(lg) if (not i.arg) or x.tag in i.arg]
                if pos: emit(l=len(lg) - 1 - max(pos))
            elif i.op == 'waitall': emit(0, 0)
            elif i.op == 'forget':
                vm = []; lg = []
            else: out.append(i)
            continue
        if i.kind == 'wait':
            m = re.search(r'vmcnt\((\d+)\)', i.text)
            if m: n = int(m.group(1)); vm = vm[len(vm) - n:] if (n and len(vm) > n) else (vm if n else [])
            m = re.search(r'lgkmcnt\((\d+)\)', i.text)
            if m: n = int(m.group(1)); lg = lg[len(lg) - n:] if (n and len(lg) > n) else (lg if n else [])
            out.append(i); continue
        touch = set(i.src) | set(i.dst)
        v = l = None
        for n, x in enumerate(vm):
            if touch & set(x.dst):
                if i.kind == 'vmem' and not (set(i.src) & set(x.dst)): continue
                v = len(vm) - 1 - n
        for n, x in enumerate(lg):
            if touch & set(x.dst):
                if i.kind == 'ds' and x.kind == 'ds' and not (set(i.src) & set(x.dst)): continue
                l = len(lg) - 1 - n
        emit(v, l)
        out.append(i)
        if i.kind in ('vmem', 'dma') and i.tag != 'nocount': vm.append(i)
        if i.kind in ('ds', 'smem') and i.tag != 'nocount': lg.append(i)
    return out

def passes(i): return 8 if '32x32' in i.op else 4
def isv(i): return i.kind in ('valu', 'trans')
def need_ws(p, c):
    pd, ps, cd, cs = set(p.dst), set(p.src), set(c.dst), set(c.src)
    n = 0
    vg = lambda s: {r for r in s if r[0] in 'va' and r != 'vcc'}
    sg = lambda s: {r for r in s if r[0] == 's' or r == 'vcc'}
    if isv(p):
        if c.kind == 'mfma' and vg(pd) & cs: n = max(n, 2)
        if isv(c):
            if c.op.endswith('_dpp') and vg(pd) & cs: n = max(n, 2)
            if c.op.startswith('v_permlane') and vg(pd) & cs: n = max(n, 2)
            if c.op.startswith('v_read') and vg(pd) & cs: n = max(n, 1)
            if sg(pd) & cs: n = max(n, 4 if c.op.startswith(('v_readlane', 'v_writelane')) else 2)
            if p.kind == 'trans' and c.kind != 'trans' and vg(pd) & cs: n = max(n, 1)
            if p.op.endswith('_sdwa') and vg(pd) & (cs | cd): n = max(n, 1)
        if c.kind in ('vmem', 'dma') and sg(pd) & cs: n = max(n, 5)
        if c.kind in ('salu', 'smem', 'branch') and sg(pd) & cs: n = max(n, 1)
        if p.kind == 'trans' and c.kind in ('ds', 'vmem', 'dma') and vg(pd) & cs: n = max(n, 1)
    if p.kind == 'mfma':
        P = passes(p)
        if c.kind == 'mfma':
            cC = set(regs_of(c.ops[3])); cAB = set(regs_of(c.ops[1])) | set(regs_of(c.ops[2]))
            if pd & cAB: n = max(n, P + 4)
            if pd & cC and not (pd == cC and passes(c) == P): n = max(n, P + 2)
            if pd & cd and not (pd & cC): n = max(n, P + 4)
        elif c.kind in ('valu', 'trans', 'ds', 'vmem', 'dma'):
            if pd & (cs | cd): n = max(n, P + 4)
            pC = set(regs_of(p.ops[3]))
            if pC & cd: n = max(n, P - 1)
    if p.kind == 'salu' and 'm0' in pd and 'm0' in cs and c.kind in ('ds', 'dma'): n = max(n, 1)
    if p.kind == 'vmem' and 'store' in p.op and ('x4' in p.op or 'x3' in p.op):
        data = set(regs_of(p.ops[0] if p.op.startswith('buffer') else p.ops[1]))
        if data & cd: n = max(n, 2)
    return n

def insert_nops(ins):
    out = []
    for c in ins:
        if c.kind in ('pseudo', 'dir', 'label'): out.append(c); continue
        need = 0; dist = 0
        for p in reversed(out):
            if p.kind in ('pseudo', 'dir', 'label'): continue
            if dist >= 20: break
            w = need_ws(p, c)
            if w > dist: need = max(need, w - dist)
            dist += (p.arg + 1) if p.kind == 'nop' else 1
        while need > 0:
            k = min(need, 16); out.append(Ins(f's_nop {k - 1}')); need -= k
        out.append(c)
    return out

def finalize(stream):
    ins = insert_nops(insert_waits(stream.flat()))
    return [i.text for i in ins if i.kind != 'pseudo']

class Regs:
    def __init__(self, t, n, first=0):
        self.t = t; self.free_ = [True] * n
        for i in range(first): self.free_[i] = False
        self.hi = first
    def alloc(self, n=1, align=None):
        align = align or (1 if n == 1 else 2)
        for b in range(0, len(self.free_) - n + 1, align):
            if all(self.free_[b:b + n]):
                for i in range(b, b + n): self.free_[i] = False
                self.hi = max(self.hi, b + n)
                return Reg(self.t, b, n)
        raise RuntimeError(f'out of {self.t} regs (need {n})')
    def free(self, *rs):
        for r in rs:
            for i in range(r.b, r.b + r.n):
                assert not self.free_[i], ('double free', r)
                self.free_[i] = True
class Reg:
    def __init__(self, t, b, n): self.t = t; self.b = b; self.n = n
    def __str__(self): return f'{self.t}{self.b}' if self.n == 1 else f'{self.t}[{self.b}:{self.b + self.n - 1}]'
    __repr__ = __str__
    def __format__(self, spec): return str(self)
    def __getitem__(self, k):
        if isinstance(k, slice):
            a = k.start or 0; e = self.n if k.stop is None else k.stop
            assert 0 <= a < e <= self.n, (self, k)
            return Reg(self.t, self.b + a, e - a)
        assert 0 <= k < self.n, (self, k)
        return Reg(self.t, self.b + k, 1)
    def sub(self, a, n): return self[a:a + n]

class Sched:
    def __init__(self, budget=6):
        self.pre = Stream(); self.mf = []; self.gaps = []; self.budget = budget; self.tails = {}; self.block = set()
    def mfma(self, text):
        self.mf.append([Ins(text)]); self.gaps.append(Stream()); return len(self.mf) - 1
    def here(self):
        return self.gaps[-1] if self.gaps else self.pre
    def n(self): return len(self.mf)
    def occ(self, g): return sum(cost(a) for a in self.gaps[g]) + sum(cost(a) for a in self.tails.get(g, []))
    def at(self, g, stream):
        self.gaps[g].add(stream)
    def place(self, fill, g0, g1, dense=False, budget=None, step=None):
        budget = budget or self.budget
        g1 = min(g1, self.n())
        if step:
            g = float(g0)
            for a in fill:
                self.gaps[min(int(g), g1 - 1)].append(a)
                if any(i.kind in ('dma', 'vmem') for i in a): g += step
            return min(int(g), g1 - 1)
        free = [max(0, budget - self.occ(g)) for g in range(g0, g1)]
        total = sum(cost(a) for a in fill); cap = sum(free)
        if total > cap:
            ex = (total - cap) / (g1 - g0); free = [f + ex for f in free]; scale = 1.0
        else: scale = 1.0 if dense else total / cap
        fi = 0; acc = 0.0; used = 0; last = g0
        for g in range(g0, g1):
            acc += free[g - g0] * scale
            if dense: acc = min(acc, used + free[g - g0] + 1)
            while fi < len(fill) and used + cost(fill[fi]) <= acc + 0.5:
                used += cost(fill[fi]); self.gaps[g].append(fill[fi]); fi += 1; last = g
        while fi < len(fill): self.gaps[g1 - 1].append(fill[fi]); fi += 1; last = g1 - 1
        return last
    def tail(self, g, stream):
        self.tails.setdefault(g, Stream()).add(stream)
    def hasmem(self, g): return g in self.block or any(i.kind in ('vmem', 'dma') for a in self.gaps[g] for i in a)
    def mem(self, fill, g0, step=2.0):
        pos = float(g0); pend = []; first = None; last = g0; where = []
        for a in fill:
            pend.append(a)
            if any(i.kind in ('dma', 'vmem') for i in a):
                g = int(pos) | 1
                while g < self.n() - 1 and self.hasmem(g): g += 2
                g = min(g, self.n() - 1)
                for x in pend: self.gaps[g].append(x)
                pend = []; where.append(g); last = g
                pos = max(pos + step, g + 1)
        for x in pend: self.gaps[last].append(x)
        return where, pos
    def even(self, fill, g0, per=2):
        g = g0 + (g0 & 1); k = 0
        for a in fill:
            self.gaps[g].append(a)
            if a[0].kind != 'pseudo':
                k += 1
                if k == per: k = 0; g += 2
        return g - (2 if k == 0 else 0)
    def out(self):
        s = Stream(); s.add(self.pre)
        for n, (m, g) in enumerate(zip(self.mf, self.gaps)):
            s.append(m); s.add(g)
            if n in self.tails: s.add(self.tails[n])
        return s

import subprocess, os, tempfile
def _sizes(lines):
    src = '\n'.join(lines) + '\n'
    r = subprocess.run(['llvm-mc', '-triple=amdgcn-amd-amdhsa', '-mcpu=gfx950', '-show-encoding'], input=src, capture_output=True, text=True)
    assert r.returncode == 0, r.stderr[:2000]
    out = []
    for l in r.stdout.split('\n'):
        m = re.search(r'; encoding: \[(.*)\]', l)
        if m: out.append(len(m.group(1).split(',')))
    return out
NOE64 = ('v_readfirstlane', 'v_permlane', 'v_fmaak', 'v_fmamk', 'v_accvgpr', 'v_nop', 'v_dot2c')
def align(ins, nopcost=5.0):
    real = [i for i in ins if i.kind not in ('pseudo', 'dir')]
    code = [i for i in real if i.kind != 'label']
    sz = _sizes([i.text for i in real]); assert len(sz) == len(code), (len(sz), len(code))
    size = {id(i): s for i, s in zip(code, sz)}
    INF = 1e18
    best = [0.0, INF]; ch = []
    for i in code:
        s = size[id(i)]
        flex = s == 4 and isv(i) and not i.op.startswith(NOE64) and not i.op.endswith(('_e32', '_e64'))
        opts = [(s, 0.0, 'k')]
        if flex: opts.append((8, 0.01, 'w'))
        nb = [INF, INF]; c = [None, None]
        for p in (0, 1):
            if best[p] >= INF: continue
            for pad in (0, 1):
                q = p ^ pad
                for (z, e, tag) in opts:
                    cst = best[p] + e + pad * nopcost + (1.0 if (z == 8 and q == 1) else 0.0)
                    r = q ^ (1 if z % 8 == 4 else 0)
                    if cst < nb[r]: nb[r] = cst; c[r] = (p, pad, tag)
        best = nb; ch.append(c)
    p = 0 if best[0] <= best[1] else 1
    dec = {}
    for i, c in zip(reversed(code), reversed(ch)):
        pp, pad, tag = c[p]; dec[id(i)] = (pad, tag); p = pp
    out = []
    for i in ins:
        if id(i) in dec:
            pad, tag = dec[id(i)]
            if pad: out.append(Ins('s_nop 0'))
            if tag == 'w':
                j = Ins(i.text.replace(i.op, i.op + '_e64', 1), i.tag); out.append(j); continue
        out.append(i)
    return out
def expand_trace(ins, vreg):
    out = []; names = []; n = 0
    for i in ins:
        if i.kind == 'pseudo' and i.op == 'trreset': n = 1; continue
        if i.kind == 'pseudo' and i.op in ('tr', 'trend'):
            if n: out.append(Ins(f'v_writelane_b32 {vreg}, s{98 + 2 * ((n - 1) % 2)}, {n - 1}'))
            if i.op == 'tr':
                out.append(Ins(f's_memtime s[{98 + 2 * (n % 2)}:{99 + 2 * (n % 2)}]')); names.append(i.arg[0]); n += 1
                assert n <= 56
            else: names.append('|')
        else: out.append(i)
    return out, names
def finalize2(stream, do_align=True, trv=None):
    ins = stream.flat()
    if trv: ins, finalize2.names = expand_trace(ins, trv)
    ins = insert_nops(insert_waits(ins))
    if do_align: ins = align(ins)
    return [i.text for i in ins if i.kind != 'pseudo']

def sprinkle(main, fill, first, every):
    out = Stream(); fi = 0; nxt = first
    for n, a in enumerate(main):
        if n >= nxt and fi < len(fill):
            while fi < len(fill):
                x = fill[fi]; fi += 1; out.append(x)
                if any(i.kind in ('dma', 'vmem') for i in x): break
            nxt = n + every
        out.append(a)
    while fi < len(fill): out.append(fill[fi]); fi += 1
    return out
```

```python
import sys, math, struct
from fw import *
from asmlib import K, build

HOFF = 0
UOFF = 8 << 20
AOFF = 10 << 20
GOFF = 12 << 20
FHOFF = 13 << 20
FAOFF = FHOFF + 1792 * 128
TOFF = 16 << 20
WSB = 32 << 20
L_K = 0
L_U = 8320
L_C = 18560
L_AB = 22720
L_X = 24576
L_S = 8320
L_R = 32768
def slot(item): return L_R + ((item + 1) % 8) * 16384
def win(addr):
    w = (addr - L_R) // 65536
    return w, addr - L_R - w * 65536
def f2h(x): return hex(struct.unpack('<I', struct.pack('<f', x))[0])
LOG2E = 1.4426950408889634
SPIN = 30000
NAMES = ['pro', 'kgen', 'p0', 'p1', 'epi1', 'conv', 'g2a', 'g2b', 'end']

class Gen:
    def __init__(self, opt):
        self.opt = opt
        self.V = Regs('v', 256, 1); self.A = Regs('a', 256); self.S = Regs('s', 95, 60)
        self.cold = Stream()
        self.nlab = 0
        self.nstamp = 0
        st = opt.get('stamps')
        self.names = NAMES if st in (None, 1) else (st.split(',') + ['-'] * 8)[:8] + ['end']
    def spin_odo(self, r):
        if not self.opt.get('trace'): return ''
        self.nodo = getattr(self, 'nodo', 0) + 1
        return f'v_writelane_b32 v255, {r}, {55 + self.nodo}'
    def lab(self, n):
        self.nlab += 1; return f'L_{n}_{self.nlab}'
    def streg(self, i):
        if 2 <= i < 11 and self.names[i - 2] in ('karg', 'iss'): return Reg('s', 100, 2)
        return Reg('s', 96 + 2*i if i < 2 else 2*i, 2)
    def stamp(self, s, name=None, real=False):
        if not self.opt.get('stamps'): return
        if name is not None:
            if name not in self.names: return
            self.nstamp = 2 + self.names.index(name)
        s(f'{"s_memrealtime" if (real or self.opt.get("allreal")) else "s_memtime"} {self.streg(self.nstamp)}')
        self.nstamp += 1
    def stamp_out(self, s):
        if not self.opt.get('stamps'): return
        V = self.V
        s('@waitall')
        a = V.alloc(); d = V.alloc(2)
        s(f'''s_lshl_b32 s3, s2, 2
        s_add_u32 s3, s3, {self.sW}
        s_lshl_b32 s3, s3, 7
        s_add_u32 s3, s3, {TOFF}
        v_mov_b32 {a}, 0''')
        for i in range(12):
            s(f'''v_mov_b32 {d[0]}, {self.streg(i)[0]}
            v_mov_b32 {d[1]}, {self.streg(i)[1]}
            buffer_store_dwordx2 {d}, {a}, s[52:55], s3 offen offset:{8*i}
            s_nop 1''')
        V.free(a, d)
    def srd(self, s, d, lo, hi, n):
        s(f'''s_mov_b32 s{d}, {lo}
        s_and_b32 s{d+1}, {hi}, 0xffff
        s_mov_b32 s{d+2}, {n}
        s_mov_b32 s{d+3}, 0x20000''')
    def poll_check(self, s, ld, reg, val=-1):
        slow = self.lab('slow'); ok = self.lab('ok'); lp = self.lab('lp')
        s(f'v_cmp_ne_u32 vcc, {val}, {reg}')
        s.atom(f'''s_cbranch_vccnz {slow}
        {ok}:''')
        c = self.cold
        c(f'''@forget
        {slow}:
        s_mov_b32 s3, 0
        {lp}:
        s_add_u32 s3, s3, 1
        s_cmp_gt_u32 s3, {SPIN}
        s_cbranch_scc1 {ok}
        {self.spin_odo('s3')}
        s_sleep {self.opt.get('slp', 2)}
        {ld}
        s_waitcnt vmcnt(0)
        v_cmp_ne_u32 vcc, {val}, {reg}
        s_cbranch_vccnz {lp}
        s_branch {ok}''')

    def entry(self):
        s = Stream(); V = self.V; S = self.S
        self.stamp(s, real=True); self.stamp(s)
        self.lane = V.alloc(); self.sW = S.alloc()
        t = V.alloc(); t2 = V.alloc()
        s(f'''
        s_load_dwordx16 s[4:19], s[0:1], 0
        s_load_dwordx16 s[20:35], s[0:1], 64
        s_load_dwordx2 s[36:37], s[0:1], 128
        s_cmp_ge_u32 s2, 256
        s_cbranch_scc1 L_end
        s_getpc_b64 s[38:39]
        L_pc:
        v_lshlrev_b32 {t}, 7, v0
        v_min_u32 {t}, L_end-L_pc, {t}
        global_load_dword {t2}, {t}, s[38:39]
        v_lshrrev_b32 {t}, 6, v0
        v_and_b32 {self.lane}, 63, v0
        v_readfirstlane_b32 {self.sW}, {t}
        s_cmp_lt_u32 s2, 32
        s_cbranch_scc1 L_helper
        ''')
        V.free(t)
        self.pfreg = t2
        return s

    def prologue(self):
        s = Stream(); V = self.V; S = self.S; l = self.lane; W = self.sW
        sM = self.sM = S.alloc(); sRB = self.sRB = S.alloc(); sCB = self.sCB = S.alloc()
        sCOL = self.sCOL = S.alloc(); sR64 = self.sR64 = S.alloc()
        sRG = self.sRG = S.alloc(); sCG = self.sCG = S.alloc()
        sT = self.sT = S.alloc(); sT2 = self.sT2 = S.alloc()
        self.sLW = S.alloc()
        s(f'''
        s_sub_u32 {sM}, s2, 32
        s_lshr_b32 {sT}, {sM}, 3            ; j
        s_and_b32 {sT2}, {sM}, 6
        s_lshl_b32 {sRB}, {sT2}, 1
        s_and_b32 {sT2}, {sT}, 3
        s_add_u32 {sRB}, {sRB}, {sT2}       ; rb
        s_lshr_b32 {sCOL}, {sT}, 2          ; col
        s_and_b32 {sT2}, {sM}, 1
        s_mul_i32 {sCB}, {sT2}, 7
        s_add_u32 {sCB}, {sCB}, {sCOL}      ; cb
        s_lshl_b32 {sR64}, {sRB}, 1
        s_add_u32 {sR64}, {sR64}, {sT2}     ; R64
        s_lshr_b32 {sRG}, {W}, 1
        s_and_b32 {sCG}, {W}, 1
        s_lshl_b32 {self.sLW}, {W}, 12
        ''')
        po = V.alloc()
        s(f'''s_lshl_b32 {sT}, {sM}, 10
        v_lshl_add_u32 {po}, v0, 2, {sT}''')
        vx = self.vx = V.alloc(4); vw = self.vw = V.alloc(4); vd = self.vd = V.alloc(4)
        r8 = V.alloc(); c8 = V.alloc(); g4 = V.alloc(); t = V.alloc(); t2 = V.alloc()
        s(f'''
        v_lshrrev_b32 {r8}, 3, {l}
        v_and_b32 {c8}, 7, {l}
        v_lshrrev_b32 {g4}, 4, {l}
        s_lshl_b32 {sT}, {sRB}, 2
        s_add_u32 {sT}, {sT}, {W}
        s_mul_i32 {sT}, {sT}, {32*896}
        v_mul_u32_u24 {t}, 896, {r8}
        v_add_u32 {t}, {sT}, {t}
        v_xor_b32 {t2}, {c8}, {g4}
        v_lshl_add_u32 {vx[0]}, {t2}, 4, {t}
        v_xor_b32 {t2}, 4, {t2}
        v_lshl_add_u32 {vx[1]}, {t2}, 4, {t}
        v_add_u32 {vx[2]}, {2*(8*896-1024)}, {vx[0]}
        v_add_u32 {vx[3]}, {3*(8*896-1024)}, {vx[1]}
        v_add_u32 {vx[1]}, {8*896-1024}, {vx[1]}
        v_and_b32 {t2}, 1, {g4}
        v_lshlrev_b32 {t2}, 2, {t2}
        v_xor_b32 {t2}, {c8}, {t2}
        s_mul_i32 {sT}, {sCG}, {32*3584}
        s_lshl_b32 {sT2}, {sCB}, 8
        s_add_u32 {sT}, {sT}, {sT2}
        v_mul_u32_u24 {t}, 3584, {r8}
        v_add_u32 {t}, {sT}, {t}
        v_lshl_add_u32 {vw[0]}, {t2}, 4, {t}
        v_add_u32 {vw[1]}, {1*(8*3584-1024)}, {vw[0]}
        v_add_u32 {vw[2]}, {2*(8*3584-1024)}, {vw[0]}
        v_add_u32 {vw[3]}, {3*(8*3584-1024)}, {vw[0]}
        s_lshl_b32 {sT}, {sCOL}, 7
        v_mul_u32_u24 {t}, 896, {r8}
        v_add_u32 {t}, {sT}, {t}
        v_lshl_add_u32 {vd[0]}, {t2}, 4, {t}
        v_add_u32 {vd[1]}, {1*(8*896-1024)}, {vd[0]}
        v_add_u32 {vd[2]}, {2*(8*896-1024)}, {vd[0]}
        v_add_u32 {vd[3]}, {3*(8*896-1024)}, {vd[0]}
        ''')
        V.free(r8, c8, g4, t, t2)
        self.par = V.alloc(6)
        self.sLD = S.alloc(); self.sDS = S.alloc()
        s('@waitlg')
        for n in range(6):
            s(f'global_load_dword {self.par[n]}, {po}, s[{6+2*n}:{7+2*n}]')
        s(f'''s_lshl_b32 {sT}, {sM}, 2
        s_load_dword {self.sLD}, s[18:19], {sT}
        s_load_dword {self.sDS}, s[20:21], {sT}''')
        V.free(po)
        self.srd(s, 40, 's4', 's5', 2048 * 896)
        s.atom(f'''s_cmp_eq_u32 {sRG}, 0
        s_cselect_b32 s44, s24, s26
        s_cselect_b32 s45, s25, s27''')
        s(f'''s_and_b32 s45, s45, 0xffff
        s_mov_b32 s46, {448*3584}
        s_mov_b32 s47, 0x20000''')
        for it in range(7): s.add(self.dma(it))
        self.srd(s, 48, 's28', 's29', 1792 * 896)
        self.srd(s, 52, 's36', 's37', WSB)
        self.srd(s, 56, 's32', 's33', 2048 * 896)
        self.sDU = S.alloc(7)
        for n in range(7):
            s(f'''s_mul_i32 {sT}, {W}, 7
            s_add_u32 {sT}, {sT}, {n}
            s_lshr_b32 {sT2}, {sT}, 1
            s_lshl_b32 {sT2}, {sT2}, 2
            s_and_b32 {sT}, {sT}, 1
            s_add_u32 {sT}, {sT}, {sT2}
            s_mul_i32 {self.sDU[n]}, {sT}, {32*896}''')
        return s

    def dma(self, it):
        s = Stream(); sT = self.sT
        if it < 14 and it % 2 == 0:
            v, srd, so = self.vx, 's[40:43]', f's_mov_b32 {sT}, {(it // 2) * 128}'
        elif it < 21:
            p, c = (0, it // 2) if it < 14 else (1, it - 14)
            v, srd, so = self.vw, 's[44:47]', f's_mov_b32 {sT}, {c * 64 * 3584 + p * 128}'
        else:
            p, n = divmod(it - 21, 7)
            v, srd, so = self.vd, 's[48:51]', f's_add_u32 {sT}, {self.sDU[n]}, {p * 64 * 896}'
        txt = f's_add_u32 m0, {self.sLW}, {slot(it)}\n{so}\n'
        txt += '\n'.join(f'buffer_load_dwordx4 {v[i]}, {srd}, {sT} offen offset:{1024 * i} lds' for i in range(4))
        s.atom(txt, tag=f'it{it}')
        return s

    def addrs(self):
        s = Stream(); V = self.V; l = self.lane; sT = self.sT; sT2 = self.sT2
        i = V.alloc(); G = V.alloc(); t = V.alloc(); t2 = V.alloc(); hl = V.alloc(); t3 = V.alloc()
        ax = self.ax = [V.alloc(4), V.alloc(4)]
        aw = self.aw = V.alloc(2); ad = self.ad = [V.alloc(2), V.alloc(2)]
        self.l16 = V.alloc()
        s(f'''
        v_lshlrev_b32 {self.l16}, 4, {l}
        v_and_b32 {i}, 15, {l}
        v_lshrrev_b32 {G}, 4, {l}
        v_lshrrev_b32 {hl}, 5, {l}
        v_and_b32 {t}, 31, {l}
        s_lshl_b32 {sT}, {self.sRG}, 13
        s_add_u32 {sT}, {sT}, {L_R}
        v_lshl_add_u32 {t}, {t}, 7, {sT}
        v_bfe_u32 {t2}, {l}, 1, 3
        v_xor_b32 {t2}, {t2}, {hl}
        v_lshl_add_u32 {ax[0][0]}, {t2}, 4, {t}
        v_xor_b32 {ax[0][1]}, 32, {ax[0][0]}
        v_xor_b32 {ax[0][2]}, 64, {ax[0][0]}
        v_xor_b32 {ax[0][3]}, 96, {ax[0][0]}''')
        for k in range(4): s(f'v_add_u32 {ax[1][k]}, 0x10000, {ax[0][k]}')
        s(f'''
        v_lshrrev_b32 {t3}, 3, {i}
        v_xor_b32 {t3}, {self.sCG}, {t3}
        v_lshlrev_b32 {t3}, 6, {t3}
        v_lshrrev_b32 {t}, 2, {i}
        v_lshl_add_u32 {t3}, {t}, 7, {t3}      ; (i>>2)*128 + half*64
        v_add_u32 {t3}, {L_R}, {t3}
        ; W: + hl*1024 + (G&1)*32 + (i&3)*8
        v_lshl_add_u32 {t}, {hl}, 10, {t3}
        v_and_b32 {t2}, 1, {G}
        v_lshl_add_u32 {t}, {t2}, 5, {t}
        v_and_b32 {t2}, 3, {i}
        v_lshl_add_u32 {aw[0]}, {t2}, 3, {t}
        v_add_u32 {aw[1]}, 0x10000, {aw[0]}
        v_and_b32 {t}, 1, {i}
        v_lshlrev_b32 {t}, 5, {t}
        v_and_b32 {t2}, 1, {G}
        v_lshl_add_u32 {t}, {t2}, 4, {t}
        v_bfe_u32 {t2}, {i}, 1, 1
        v_lshl_add_u32 {t}, {t2}, 3, {t}
        v_add_u32 {t3}, {t3}, {t}
        v_lshl_add_u32 {t3}, {hl}, 9, {t3}
        v_add_u32 {ad[0][0]}, {self.sLW}, {t3}
        v_xor_b32 {ad[1][0]}, 64, {ad[0][0]}
        v_add_u32 {ad[0][1]}, 0x10000, {ad[0][0]}
        v_add_u32 {ad[1][1]}, 0x10000, {ad[1][0]}
        ''')
        ak = self.ak = V.alloc(); au = self.au = V.alloc()
        s(f'''
        s_mul_i32 {sT}, {self.sRG}, 4160
        s_add_u32 {sT}, {sT}, {L_K + 32}
        v_lshl_add_u32 {t}, {hl}, 6, {t}
        v_lshrrev_b32 {t2}, 2, {i}
        v_lshlrev_b32 {t2}, 3, {t2}
        v_sub_u32 {t}, {t}, {t2}
        v_add_u32 {ak}, {sT}, {t}
        s_mul_i32 {sT}, {self.sRG}, 5120
        s_lshl_b32 {sT2}, {self.sCG}, 9
        s_add_u32 {sT}, {sT}, {sT2}
        s_add_u32 {sT}, {sT}, {L_U + 1024 - 14*64}
        v_and_b32 {t}, 1, {G}
        v_and_b32 {t2}, 3, {l}
        v_lshl_add_u32 {t}, {t}, 2, {t2}        ; a'
        v_sub_u32 {t2}, {t}, {hl}
        v_lshlrev_b32 {t2}, 6, {t2}
        v_add_u32 {t2}, {sT}, {t2}
        v_lshrrev_b32 {t3}, 2, {i}
        v_lshl_add_u32 {au}, {t3}, 4, {t2}
        ''')
        self.vg = V.alloc()
        s(f'''
        v_lshl_add_u32 {t}, {t}, 1, {hl}
        v_lshl_add_u32 {t}, {t3}, 5, {t}
        s_lshl_b32 {sT}, {self.sCG}, 4
        v_add_u32 {self.vg}, {sT}, {t}
        ''')
        V.free(i, G, t, t2, hl, t3)
        return s

    def cmul_batch(self, s, items, tmp):
        for n, (d, a, b) in enumerate(items):
            s(f'v_pk_mul_f32 {tmp.sub(2*n, 2)}, {a}, {b} op_sel:[0,0] op_sel_hi:[0,1]')
        for n, (d, a, b) in enumerate(items):
            s(f'v_pk_fma_f32 {d}, {a}, {b}, {tmp.sub(2*n, 2)} op_sel:[1,1,0] op_sel_hi:[1,0,1] neg_lo:[0,1,0]')
    def kgen(self):
        s = Stream(); V = self.V; S = self.S; l = self.lane; sT = self.sT; sT2 = self.sT2
        dt = V.alloc(2); acc = V.alloc(16, 4); af = V.alloc(); sSC = S.alloc()
        t = V.alloc(); hl = V.alloc()
        s(f'''
        s_mul_i32 {sSC}, {self.sW}, 8704
        s_add_u32 {sSC}, {sSC}, {L_S}
        v_and_b32 {t}, 31, {l}
        v_mul_u32_u24 {t}, 272, {t}
        v_lshrrev_b32 {hl}, 5, {l}
        v_lshl_add_u32 {t}, {hl}, 4, {t}
        v_add_u32 {af}, {sSC}, {t}
        s_lshl_b32 {sT}, {self.sRG}, 4
        s_lshr_b32 {self.sLD}, {self.sLD}, {sT}
        s_lshl_b32 {self.sLD}, {self.sLD}, 16
        s_lshr_b32 {self.sDS}, {self.sDS}, {sT}
        s_lshl_b32 {self.sDS}, {self.sDS}, 16
        v_mov_b32 {t}, {f2h(LOG2E)}
        v_mul_f32 {t}, {self.sLD}, {t}
        v_exp_f32 {t}, {t}
        v_cvt_pk_bf16_f32 {t}, {t}, {t}
        v_lshlrev_b32 {dt[0]}, 16, {t}
        v_lshlrev_b32 {dt[1]}, 16, {t}
        s_mov_b32 m0, {sSC}
        ''')
        P = V.alloc(6); tmp = V.alloc(10); cv = V.alloc(8)
        z = V.alloc(2); y1 = V.alloc(2); y4 = V.alloc(2); vv = V.alloc(2); z2 = V.alloc(2); z4 = V.alloc(2)
        c = V.alloc(8); X = V.alloc(18); Yf = V.alloc(32, 4); Xf = V.alloc(32, 4)
        ncv = [0]
        def put(val, rows, neg=False):
            r = cv[ncv[0] % 8]; ncv[0] += 1
            s(f'v_cvt_pk_bf16_f32 {r}, {val[0]}, {"-" if neg else ""}{val[1]}')
            return (r, rows)
        def flush(lst):
            for r, rows in lst:
                for R in rows: s(f'ds_write_addtid_b32 {r} offset:{R * 272}')
        for u in range(2):
            for n in range(6):
                s(f'v_lshlrev_b32 {P[n]}, 16, {self.par[n]}' if u == 0 else f'v_and_b32 {P[n]}, 0xffff0000, {self.par[n]}')
            self.stamp(s, f'k{u}a')
            A = P.sub(0, 2); B = P.sub(2, 2); C = P.sub(4, 2)
            s(f'''v_pk_mul_f32 {A}, {A}, {dt}
            v_pk_mul_f32 {B}, {B}, {dt}
            v_mul_f32 {A[0]}, {f2h(LOG2E)}, {A[0]}
            v_mul_f32 {A[1]}, 0.15915494, {A[1]}
            v_mul_f32 {tmp[0]}, 0x41000000, {A[0]}
            v_mul_f32 {tmp[1]}, 0x41000000, {A[1]}
            v_rndne_f32 {tmp[2]}, {A[1]}
            v_rndne_f32 {tmp[3]}, {tmp[1]}
            v_exp_f32 {tmp[4]}, {tmp[0]}
            v_sub_f32 {tmp[1]}, {tmp[1]}, {tmp[3]}
            v_sub_f32 {A[1]}, {A[1]}, {tmp[2]}
            v_cos_f32 {y1[0]}, {tmp[1]}
            v_sin_f32 {y1[1]}, {tmp[1]}
            v_exp_f32 {tmp[6]}, {A[0]}
            v_cos_f32 {z[0]}, {A[1]}
            v_sin_f32 {z[1]}, {A[1]}
            v_pk_mul_f32 {y1}, {y1}, {tmp.sub(4, 2)} op_sel_hi:[1,0]
            v_pk_mul_f32 {z}, {z}, {tmp.sub(6, 2)} op_sel_hi:[1,0]
            v_mov_b32 {cv[7]}, 0x3f80
            ds_write_addtid_b32 {cv[7]} offset:0
            ''')
            ncv[0] = 0
            cc = [c.sub(2*n, 2) for n in range(4)]
            XX = [X.sub(2*n, 2) for n in range(9)]
            self.cmul_batch(s, [(cc[2], y1, y1), (XX[0], C, B), (z2, z, z)], tmp)
            self.cmul_batch(s, [(cc[3], cc[2], y1), (y4, cc[2], cc[2]), (XX[1], XX[0], z), (z4, z2, z2), (XX[8], XX[0], y1)], tmp)
            flush([put(y1, [1]), put(cc[2], [2]), put(cc[3], [3]), put(y4, [4])])
            self.cmul_batch(s, [(cc[1], y1, y4), (cc[2], cc[2], y4), (cc[3], cc[3], y4), (cc[0], y4, y4)], tmp)
            for q0 in range(5, 32, 4):
                lst = [put(cc[1], [q0]), put(cc[2], [q0 + 1]), put(cc[3], [q0 + 2])]
                if q0 + 3 < 32: lst.append(put(cc[0], [q0 + 3]))
                flush(lst)
                if q0 + 4 < 32:
                    self.cmul_batch(s, [(cc[n], cc[n], y4) for n in (1, 2, 3, 0)], tmp)
            Vv = cc[0]
            self.stamp(s, f'k{u}b')
            for st in range(8): s(f'ds_read_b128 {Yf.sub(4*st, 4)}, {af} offset:{32 * st}')
            self.cmul_batch(s, [(XX[2], XX[0], z2), (XX[3], XX[1], z2), (XX[4], XX[0], z4), (XX[5], XX[1], z4)], tmp)
            flush([put(XX[n], [n], True) for n in (0, 1, 2, 3)])
            self.cmul_batch(s, [(XX[6], XX[2], z4), (XX[7], XX[3], z4)], tmp)
            flush([put(XX[n], [n], True) for n in (4, 5, 6, 7)])
            self.cmul_batch(s, [(XX[n], XX[n], Vv) for n in (0, 4, 8, 2, 6)], tmp)
            flush([put(XX[0], [8], True), put(XX[4], [10, 12], True), put(XX[8], [14], True), put(XX[2], [9], True), put(XX[6], [13], True)])
            for h in range(2):
                self.cmul_batch(s, [(XX[n], XX[n], Vv) for n in (0, 8, 4)], tmp)
                flush([put(XX[0], [16 + 4*h], True), put(XX[8], [18 + 4*h], True), put(XX[4], [17 + 4*h], True)])
            for h in range(4):
                self.cmul_batch(s, [(XX[n], XX[n], Vv) for n in (0, 8)], tmp)
                flush([put(XX[0], [24 + 2*h], True), put(XX[8], [25 + 2*h], True)])
            self.stamp(s, f'k{u}c')
            for st in range(8): s(f'ds_read_b128 {Xf.sub(4*st, 4)}, {af} offset:{32 * st}')
            for st in range(8):
                s(f'v_mfma_f32_32x32x16_bf16 {acc}, {Xf.sub(4*st, 4)}, {Yf.sub(4*st, 4)}, {acc if (u or st) else 0}')
        self.stamp(s, 'k2')
        V.free(P, z, y1, y4, vv, z2, z4, c, X, Xf, self.par, dt)
        keep = Yf.sub(0, 8); send = Yf.sub(8, 8); got = Yf.sub(16, 8); o = Yf.sub(24, 8)
        aw_ = V.alloc(); ar_ = V.alloc(); kq = V.alloc()
        s(f'''v_add_u32 {aw_}, {sSC}, {self.l16}
        s_xor_b32 {sT}, {self.sW}, 1
        s_mul_i32 {sT}, {sT}, 8704
        s_add_u32 {sT}, {sT}, {L_S}
        v_add_u32 {ar_}, {sT}, {self.l16}
        s_mul_i32 {sT}, {self.sRG}, 4160
        s_add_u32 {sT}, {sT}, {L_K + 64}
        v_and_b32 {t}, 31, {l}
        v_lshl_add_u32 {kq}, {t}, 4, {sT}''')
        s.atom(f'''s_cmp_eq_u32 {self.sCG}, 0
        s_cselect_b64 vcc, -1, 0''')
        for n in range(8): s(f'v_cndmask_b32 {send[n]}, {acc[n]}, {acc[8 + n]}, vcc')
        s(f'''ds_write_b128 {aw_}, {send.sub(0, 4)}
        ds_write_b128 {aw_}, {send.sub(4, 4)} offset:1024''')
        for n in range(8): s(f'v_cndmask_b32 {keep[n]}, {acc[8 + n]}, {acc[n]}, vcc')
        s(f'''@waitlg
        s_barrier
        ds_read_b128 {got.sub(0, 4)}, {ar_}
        ds_read_b128 {got.sub(4, 4)}, {ar_} offset:1024''')
        for n in range(4): s(f'v_pk_add_f32 {keep.sub(2*n, 2)}, {keep.sub(2*n, 2)}, {got.sub(2*n, 2)}')
        L1 = self.lab('k1'); L2 = self.lab('k2')
        s.atom(f'''s_cmp_eq_u32 {self.sCG}, 0
        s_cbranch_scc0 {L1}
        v_cmp_eq_u32 vcc, 0, {l}
        v_mov_b32 {t}, {self.sDS}
        v_lshl_add_u32 {kq}, {hl}, 3, {kq}
        v_cndmask_b32 {t}, 0, {t}, vcc
        v_add_f32 {keep[0]}, {keep[0]}, {t}
        v_cvt_pk_bf16_f32 {o[0]}, {keep[0]}, {keep[1]}
        v_cvt_pk_bf16_f32 {o[1]}, {keep[2]}, {keep[3]}
        v_cvt_pk_bf16_f32 {o[2]}, {keep[4]}, {keep[4]}
        v_cvt_pk_bf16_f32 {o[3]}, {keep[5]}, {keep[6]}
        ds_write_b64 {kq}, {o.sub(0, 2)}
        ds_write_b64 {kq}, {o.sub(2, 2)} offset:512
        v_mov_b32 {o[4]}, 0
        v_and_b32 {t}, 15, {l}
        v_lshl_add_u32 {t}, {t}, 2, {sT}
        v_subrev_u32 {t}, 64, {t}
        ds_write_b32 {t}, {o[4]}
        s_branch {L2}
        {L1}:
        v_and_b32 {t}, 1, {l}
        v_cmp_eq_u32 vcc, 0, {t}
        v_lshl_add_u32 {t}, {hl}, 9, {kq}
        v_lshl_add_u32 {kq}, {hl}, 10, {kq}
        v_cvt_pk_bf16_f32 {o[0]}, {keep[0]}, {keep[0]}
        v_cvt_pk_bf16_f32 {o[1]}, {keep[0]}, {keep[1]}
        v_cvt_pk_bf16_f32 {o[2]}, {keep[1]}, {keep[1]}
        v_cvt_pk_bf16_f32 {o[3]}, {keep[2]}, {keep[2]}
        ds_write_b128 {t}, {o.sub(0, 4)} offset:1024
        v_cndmask_b32 {keep[0]}, {keep[5]}, {keep[4]}, vcc
        v_cndmask_b32 {keep[1]}, {keep[7]}, {keep[6]}, vcc
        v_cvt_pk_bf16_f32 {o[4]}, {keep[4]}, {keep[4]}
        v_cvt_pk_bf16_f32 {o[5]}, {keep[4]}, {keep[4]}
        v_cvt_pk_bf16_f32 {o[6]}, {keep[0]}, {keep[5]}
        v_cvt_pk_bf16_f32 {o[7]}, {keep[5]}, {keep[5]}
        ds_write_b128 {kq}, {o.sub(4, 4)} offset:2048
        v_cvt_pk_bf16_f32 {got[0]}, {keep[6]}, {keep[6]}
        v_cvt_pk_bf16_f32 {got[1]}, {keep[6]}, {keep[6]}
        v_cvt_pk_bf16_f32 {got[2]}, {keep[1]}, {keep[7]}
        v_cvt_pk_bf16_f32 {got[3]}, {keep[7]}, {keep[7]}
        ds_write_b128 {kq}, {got.sub(0, 4)} offset:2560
        {L2}:
        s_waitcnt lgkmcnt(0)''')
        V.free(tmp, cv, Yf, acc, af, t, hl, aw_, ar_, kq); S.free(sSC)
        return s

    def g1_reads(self, p, kk):
        s = Stream(); c, ks = divmod(kk, 4)
        wit = 2 * c + 1 if p == 0 else 14 + c
        w, off = win(slot(wit))
        buf = self.Wf[kk % len(self.Wf)]
        def wr(mat):
            for t in range(2):
                s(f'ds_read_b64_tr_b16 {buf.sub(4*mat + 2*t, 2)}, {self.aw[w]} offset:{off + mat*8192 + ks*2048 + t*512}')
        def xr(rt):
            if p == 0:
                wx, offx = win(slot(2 * c))
                s(f'ds_read_b128 {self.Xr.sub(8*kk + 4*rt, 4)}, {self.ax[wx][ks]} offset:{offx + rt*4096}')
        wr(0); xr(0); wr(1); xr(1)
        return s
    def g1_sync(self, p, c):
        s = Stream()
        its = [2*c, 2*c + 1] if p == 0 else [14 + c]
        s('@waitlg\n@waitvm ' + ' '.join(f'it{i}' for i in its) + '\ns_barrier')
        return s
    def g1_refill(self, p, c):
        if p == 0: its = [7] if c == 0 else [2*c + 6, 2*c + 7]
        elif c == 0: its = [20, 21]
        else: its = [21 + c]
        return [self.dma(i) for i in its]
    def gemm1(self):
        V = self.V; A = self.A
        self.Xr = A.alloc(224, 4); self.Wf = [A.alloc(8, 4), A.alloc(8, 4)]
        self.acc = [[V.alloc(16, 4) for _ in range(4)] for p in range(2)]
        pre = Stream(); pre.add(self.g1_sync(0, 0)); pre.add(self.g1_reads(0, 0))
        out = []
        pend = self.g1_refill(0, 0)
        for p in range(2):
            s = Stream()
            for kk in range(28):
                c, ks = divmod(kk, 4)
                nxt = (p, kk + 1) if kk < 27 else ((1, 0) if p == 0 else None)
                buf = self.Wf[kk % len(self.Wf)]
                def mf(n):
                    rt, mat = divmod(n, 2); a = self.acc[p][n]
                    s(f'v_mfma_f32_32x32x16_bf16 {a}, {buf.sub(4*mat, 4)}, {self.Xr.sub(8*kk + 4*rt, 4)}, {a if kk else 0}')
                rd = self.g1_reads(*nxt) if nxt else Stream()
                if ks == 3:
                    mf(0)
                    if nxt:
                        s.add(self.g1_sync(nxt[0], nxt[1] // 4)); pend = pend + self.g1_refill(nxt[0], nxt[1] // 4)
                    h = (len(rd) + 1) // 2
                    s.add(rd[:h]); mf(1); s.add(rd[h:]); mf(2); mf(3)
                else:
                    h = (len(rd) + 1) // 2
                    mf(0); s.add(rd[:h]); mf(1); s.add(rd[h:]); mf(2)
                    if pend: s.add(pend.pop(0))
                    mf(3)
            out.append(s)
        assert not pend
        return pre, out[0], out[1]

    def epi(self, p):
        s = Stream(); V = self.V; S = self.S
        if p == 0:
            self.c1 = V.alloc(); self.sC0 = S.alloc(); self.sH = S.alloc(); self.sFH = S.alloc()
            c0 = -2 * 0.7978845608028654 * LOG2E
            s(f'''v_mov_b32 {self.c1}, {f2h(c0 * 0.044715)}
            s_mov_b32 {self.sC0}, {f2h(c0)}''')
            s.atom(f'''s_lshl_b32 {self.sH}, {self.sRB}, 1
            s_add_u32 {self.sH}, {self.sH}, {self.sRG}
            s_mul_i32 {self.sH}, {self.sH}, 28
            s_add_u32 {self.sH}, {self.sH}, {self.sCB}
            s_lshl_b32 {self.sH}, {self.sH}, 1
            s_add_u32 {self.sH}, {self.sH}, {self.sCG}
            s_lshl_b32 {self.sFH}, {self.sH}, 7
            s_add_u32 {self.sFH}, {self.sFH}, {FHOFF}
            s_lshl_b32 {self.sH}, {self.sH}, 12''')
        else:
            s(f's_add_u32 {self.sH}, {self.sH}, {28 * 4096}')
        t = V.alloc(8); o = [V.alloc(4, 2), V.alloc(4, 2)]
        nb = 4
        for rt in range(2):
            G = self.acc[p][2*rt]; U = self.acc[p][2*rt + 1]
            for b in range(0, 16, nb):
                R = range(b, b + nb); T = lambda r: t[(r % 8)]
                for r in R: s(f'v_mul_f32 {T(r)}, {G[r]}, {G[r]}')
                for r in R: s(f'v_fma_f32 {T(r)}, {T(r)}, {self.c1}, {self.sC0}')
                for r in R: s(f'v_mul_f32 {T(r)}, {G[r]}, {T(r)}')
                for r in R:
                    s(f'v_exp_f32 {T(r)}, {T(r)}')
                    s(f'v_mul_f32 {U[r]}, {G[r]}, {U[r]}')
                for r in R: s(f'v_add_f32 {T(r)}, 1.0, {T(r)}')
                for r in R: s(f'v_rcp_f32 {T(r)}, {T(r)}')
                for r in R: s(f'v_mul_f32 {U[r]}, {U[r]}, {T(r)}')
                fr = b // 8
                for r in range(b, b + nb, 2): s(f'v_cvt_pk_bf16_f32 {o[fr][(r % 8) // 2]}, {U[r]}, {U[r + 1]}')
                if (b + nb) % 8 == 0:
                    s(f'buffer_store_dwordx4 {o[fr]}, {self.l16}, s[52:55], {self.sH} offen offset:{(rt*2 + fr) * 1024} sc1', tag=f'hst{p}')
        V.free(t, *o)
        return s
    def hflag(self, p):
        s = Stream()
        s(f'@waitvm hst{p}')
        s.atom(f'''s_mov_b64 exec, 1
        buffer_store_dword {self.one}, {self.l16}, s[52:55], {self.sFH} offen offset:{p * 28 * 128} sc1
        s_mov_b64 exec, -1''')
        return s

    def dbg_load(self, which):
        s = Stream(); V = self.V
        if which == 0:
            self.one = V.alloc(); self.fl = V.alloc(); self.fa = V.alloc()
            s(f'''v_mov_b32 {self.one}, 1
            v_and_b32 {self.fa}, 31, {self.lane}
            v_lshlrev_b32 {self.fa}, 2, {self.fa}''')
            self.dbgld = f'global_load_dword {self.fl}, {self.fa}, s[34:35] sc1'
        else:
            s(f'''s_lshl_b32 {self.sT2}, {self.sR64}, 2
            v_mov_b32 {self.fa}, {self.sT2}''')
            self.dbgld = f'global_load_dword {self.fl}, {self.fa}, s[34:35] offset:128 sc1'
        s(self.dbgld)
        return s
    def u_fetch(self):
        s = Stream(); V = self.V
        self.poll_check(s, self.dbgld, self.fl)
        self.ub = V.alloc(8, 2)
        s.atom(f'''s_lshl_b32 {self.sT2}, {self.sM}, 2
        s_add_u32 {self.sT2}, {self.sT2}, {self.sW}
        s_lshl_b32 {self.sT2}, {self.sT2}, 11
        s_add_u32 {self.sT2}, {self.sT2}, {UOFF}
        buffer_load_dwordx4 {self.ub.sub(0, 4)}, {self.l16}, s[52:55], {self.sT2} offen sc1
        buffer_load_dwordx4 {self.ub.sub(4, 4)}, {self.l16}, s[52:55], {self.sT2} offen offset:1024 sc1''')
        return s
    def u_put(self):
        s = Stream(); V = self.V
        a = V.alloc(); z = V.alloc(4, 2)
        s.atom(f'''s_mul_i32 {self.sT2}, {self.sRG}, 5120
        s_add_u32 {self.sT2}, {self.sT2}, {L_U}
        v_add_u32 {a}, {self.sT2}, {self.l16}''')
        for n in range(4): s(f'v_mov_b32 {z[n]}, 0')
        s(f'ds_write_b128 {a}, {z}')
        s.atom(f'''s_lshl_b32 {self.sT2}, {self.sCG}, 11
        v_add_u32 {a}, {self.sT2}, {a}''')
        s(f'''ds_write_b128 {a}, {self.ub.sub(0, 4)} offset:1024
        ds_write_b128 {a}, {self.ub.sub(4, 4)} offset:2048''')
        s.atom(f'''s_mul_i32 {self.sT2}, {self.sRG}, 2064
        s_add_u32 {self.sT2}, {self.sT2}, {L_C}
        v_mov_b32 {a}, {self.sT2}''')
        s(f'ds_write_b128 {a}, {z}')
        V.free(a, z, self.ub)
        return s

    def conv(self):
        s = Stream(); V = self.V
        self.Z = [V.alloc(16, 4) for _ in range(4)]
        F = self.cF = [V.alloc(32, 4), V.alloc(32, 4)]
        def reads(r):
            o = Stream(); b = F[r % 2]
            for n in range(4):
                c = r + 8 * n
                for t in range(2):
                    o(f'ds_read_b64_tr_b16 {b.sub(4*n + 2*t, 2)}, {self.ak} offset:{128*c + 32*(1 - t)}')
                o(f'ds_read_b128 {b.sub(16 + 4*n, 4)}, {self.au} offset:{(16*n + 14 - 2*r) * 64}')
            return o
        s.add(reads(0))
        order = [(0, 0), (0, 1), (1, 0), (0, 2), (1, 1), (2, 0), (0, 3), (1, 2), (2, 1), (3, 0)]
        for r in range(8):
            nx = reads(r + 1) if r < 7 else Stream()
            b = F[r % 2]; seen = set()
            for n, (i, d) in enumerate(order):
                z = self.Z[i + d]
                first = (r == 0 and (i + d) not in seen); seen.add(i + d)
                s(f'v_mfma_f32_32x32x16_bf16 {z}, {b.sub(4*i, 4)}, {b.sub(16 + 4*d, 4)}, {0 if first else z}')
                s.add(nx[2*n:2*n + 2])
        V.free(*F)
        return s
    def convpost(self):
        s = Stream(); V = self.V; Z = self.Z
        ex = V.alloc(4, 2); ex2 = V.alloc()
        M = 'row_mask:0xf bank_mask:'
        def level(Ta, Tb, na, sh, d, m0, m1, extra):
            T = Ta + extra
            for r in range(na + d - 1, d - 1, -1):
                if r < na: s(f'v_add_f32_dpp {T[r]}, {Ta[r - d]}, {T[r]} row_shl:{sh} {M}{m0}')
                else: s(f'v_mov_b32_dpp {T[r]}, {Ta[r - d]} row_shl:{sh} {M}{m0}')
            for r in range(na + d):
                if r < d: s(f'v_mov_b32_dpp {T[r]}, {Tb[r]} row_shr:{sh} {M}{m1}')
                elif r < na: s(f'v_add_f32_dpp {T[r]}, {Tb[r]}, {Tb[r - d]} row_shr:{sh} {M}{m1}')
                else: s(f'v_mov_b32_dpp {T[r]}, {Tb[r - d]} quad_perm:[0,1,2,3] {M}{m1}')
            return T
        L = lambda z: [z[r] for r in range(16)]
        T01 = level(L(Z[0]), L(Z[1]), 16, 4, 1, '0x5', '0xa', [ex[0]])
        T23 = level(L(Z[2]), L(Z[3]), 16, 4, 1, '0x5', '0xa', [ex2])
        Y = level(T01, T23, 17, 8, 2, '0x3', '0xc', [ex[1], ex[2]])
        ac = V.alloc()
        s.atom(f'''s_mul_i32 {self.sT2}, {self.sRG}, 2064
        s_add_u32 {self.sT2}, {self.sT2}, {L_C}
        v_lshl_add_u32 {ac}, {self.vg}, 4, {self.sT2}''')
        s(f'ds_write_b128 {ac}, {ex} offset:16', tag='carry')
        s2 = Stream()
        o = Z[1]
        s2(f'ds_read_b128 {ex}, {ac}')
        for q in range(2, 8): s2(f'v_cvt_pk_bf16_f32 {o[q]}, {Y[2*q]}, {Y[2*q + 1]}')
        s2.atom(f'''s_lshl_b32 {self.sT2}, {self.sM}, 1
        s_add_u32 {self.sT2}, {self.sT2}, {self.sRG}
        s_lshl_b32 {self.sT2}, {self.sT2}, 12
        s_add_u32 {self.sT2}, {self.sT2}, {AOFF}
        v_lshl_add_u32 {ac}, {self.vg}, 5, {self.sT2}''')
        for r in range(3): s2(f'v_add_f32 {Y[r]}, {Y[r]}, {ex[r]}')
        for q in range(2): s2(f'v_cvt_pk_bf16_f32 {o[q]}, {Y[2*q]}, {Y[2*q + 1]}')
        s2(f'''buffer_store_dwordx4 {o.sub(0, 4)}, {ac}, s[52:55], 0 offen sc1
        buffer_store_dwordx4 {o.sub(4, 4)}, {ac}, s[52:55], 0 offen offset:16 sc1''', tag='ast')
        V.free(ex, ex2, ac, *Z)
        return s, s2
    def aflag(self):
        s = Stream()
        s('@waitvm ast')
        s.atom(f'''s_lshl_b32 {self.sT2}, {self.sM}, 2
        s_add_u32 {self.sT2}, {self.sT2}, {self.sW}
        s_lshl_b32 {self.sT2}, {self.sT2}, 7
        s_add_u32 {self.sT2}, {self.sT2}, {FAOFF}
        s_mov_b64 exec, 1
        buffer_store_dword {self.one}, {self.l16}, s[52:55], {self.sT2} offen sc1
        s_mov_b64 exec, -1''')
        return s

    def hpoll_load(self, p):
        s = Stream(); S = self.S
        if p == 0:
            self.sHC = S.alloc(); self.fh = self.V.alloc(); self.hv = self.V.alloc(2)
            s.atom(f'''s_mul_i32 {self.sHC}, {self.sR64}, 56
            s_mul_i32 {self.sT2}, {self.sW}, 7
            s_add_u32 {self.sHC}, {self.sHC}, {self.sT2}
            s_lshl_b32 {self.sT2}, {self.sHC}, 7
            s_add_u32 {self.sT2}, {self.sT2}, {FHOFF}
            v_min_u32 {self.fh}, 6, {self.lane}
            v_lshl_add_u32 {self.fh}, {self.fh}, 7, {self.sT2}
            s_lshl_b32 {self.sHC}, {self.sHC}, 12
            s_lshl_b32 {self.sT2}, {self.sRG}, 11
            v_add_u32 {self.hv[0]}, {self.sT2}, {self.l16}
            v_xor_b32 {self.hv[1]}, 0x800, {self.hv[0]}''')
        self.hld = f'buffer_load_dword {self.fl}, {self.fh}, s[52:55], 0 offen offset:{p * 28 * 128} sc1'
        s(self.hld)
        return s
    def h_loads(self, p):
        s = Stream()
        self.poll_check(s, self.hld, self.fl)
        for n in range(7):
            txt = f's_add_u32 {self.sT2}, {self.sHC}, {(p * 28 + n) * 4096}\n'
            for fr in range(2):
                for rt in range(2):
                    txt += f'buffer_load_dwordx4 {self.Hf.sub(16*n + 8*fr + 4*rt, 4)}, {self.hv[rt]}, s[52:55], {self.sT2} offen offset:{fr * 1024} sc1\n'
            s.atom(txt)
        return s
    def d_reads(self, p, n, dst):
        s = Stream(); it = 21 + 7*p + n
        w, off = win(slot(it))
        s(f'@waitvm it{it}')
        for fr in range(2):
            for dt in range(2):
                for t in range(2):
                    s(f'ds_read_b64_tr_b16 {dst.sub(8*fr + 4*dt + 2*t, 2)}, {self.ad[dt][w]} offset:{off + fr*2048 + t*1024}', tag=f'dr{it}')
        return s
    def g2_mfma(self, p, n, Dn):
        s = Stream()
        for fr in range(2):
            for sl in range(4):
                rt, dt = divmod(sl, 2); a = self.acc2[sl]
                s(f'v_mfma_f32_32x32x16_bf16 {a}, {Dn.sub(8*fr + 4*dt, 4)}, {self.Hf.sub(16*n + 8*fr + 4*rt, 4)}, {a if (p or n or fr) else 0}')
        return s

    def a_poll_load(self):
        s = Stream()
        s.atom(f'''s_lshl_b32 {self.sT2}, {self.sCOL}, 1
        s_add_u32 {self.sT2}, {self.sT2}, {self.sCG}
        s_lshl_b32 {self.sT2}, {self.sT2}, 6
        s_bfe_u32 {self.sT}, {self.sR64}, 0x10002
        s_add_u32 {self.sT2}, {self.sT2}, {self.sT}
        s_lshl_b32 {self.sT2}, {self.sT2}, 7
        s_add_u32 {self.sT2}, {self.sT2}, {FAOFF}
        v_and_b32 {self.fa}, 31, {self.lane}
        v_lshl_add_u32 {self.fa}, {self.fa}, 8, {self.sT2}''')
        self.ald = f'buffer_load_dword {self.fl}, {self.fa}, s[52:55], 0 offen sc1'
        s(self.ald)
        return s
    def g_fetch(self):
        s = Stream(); V = self.V
        self.poll_check(s, self.dbgld, self.fl)
        self.gg = V.alloc(2); self.row = V.alloc(); t = V.alloc()
        s.atom(f'''s_lshl_b32 {self.sT2}, {self.sR64}, 1
        s_add_u32 {self.sT2}, {self.sT2}, {self.sRG}
        s_lshl_b32 {self.sT2}, {self.sT2}, 5
        v_and_b32 {self.row}, 31, {self.lane}
        v_add_u32 {self.row}, {self.sT2}, {self.row}
        v_lshlrev_b32 {t}, 3, {self.row}
        s_mov_b32 {self.sT2}, {GOFF}
        buffer_load_dwordx2 {self.gg}, {t}, s[52:55], {self.sT2} offen sc1''')
        V.free(t)
        return s
    def a_fetch(self):
        s = Stream(); V = self.V; l = self.lane
        self.poll_check(s, self.ald, self.fl)
        self.ab = V.alloc(8, 2); t = V.alloc(); t2 = V.alloc()
        s.atom(f'''s_lshl_b32 {self.sT2}, {self.sCOL}, 1
        s_add_u32 {self.sT2}, {self.sT2}, {self.sCG}
        s_lshl_b32 {self.sT2}, {self.sT2}, 17
        s_lshl_b32 {self.sT}, {self.sR64}, 1
        s_add_u32 {self.sT}, {self.sT}, {self.sRG}
        s_lshl_b32 {self.sT}, {self.sT}, 6
        s_add_u32 {self.sT2}, {self.sT2}, {self.sT}
        s_add_u32 {self.sT2}, {self.sT2}, {AOFF}
        v_lshrrev_b32 {t}, 2, {l}
        v_lshlrev_b32 {t}, 12, {t}
        v_and_b32 {t2}, 3, {l}
        v_lshl_add_u32 {t}, {t2}, 4, {t}
        buffer_load_dwordx4 {self.ab.sub(0, 4)}, {t}, s[52:55], {self.sT2} offen sc1
        s_add_u32 {self.sT2}, {self.sT2}, 0x10000
        buffer_load_dwordx4 {self.ab.sub(4, 4)}, {t}, s[52:55], {self.sT2} offen sc1''')
        V.free(t, t2)
        return s
    def a_prep(self):
        s = Stream(); V = self.V; l = self.lane
        a = V.alloc(); t = V.alloc()
        if not hasattr(self, 'ga'): self.ga = V.alloc(16, 2)
        s.atom(f'''s_lshl_b32 {self.sT2}, {self.sW}, 11
        s_add_u32 {self.sT2}, {self.sT2}, {L_AB}
        v_add_u32 {a}, {self.sT2}, {self.l16}
        ds_write_b128 {a}, {self.ab.sub(0, 4)}
        ds_write_b128 {a}, {self.ab.sub(4, 4)} offset:1024
        v_lshrrev_b32 {a}, 5, {l}
        v_lshl_add_u32 {a}, {a}, 10, {self.sT2}''')
        s(f'''v_bfe_u32 {t}, {l}, 2, 2
        v_lshl_add_u32 {a}, {t}, 6, {a}
        v_bfe_u32 {t}, {l}, 4, 1
        v_lshl_add_u32 {a}, {t}, 5, {a}
        v_and_b32 {t}, 3, {l}
        v_lshl_add_u32 {a}, {t}, 3, {a}''')
        for j in range(4): s(f'ds_read_b64_tr_b16 {self.ab.sub(2*j, 2)}, {a} offset:{j * 256}')
        for q in range(8):
            s(f'''v_lshlrev_b32 {self.ga[2*q]}, 16, {self.ab[q]}
            v_and_b32 {self.ga[2*q + 1]}, 0xffff0000, {self.ab[q]}''')
        for r in range(16): s(f'v_mul_f32 {self.ga[r]}, {self.gg[0]}, {self.ga[r]}')
        V.free(a, t, self.ab)
        return s
    def final(self):
        s = Stream(); V = self.V; l = self.lane
        a = V.alloc(); ar = V.alloc(3, 1); o = V.alloc(8, 2); t = V.alloc()
        base = [slot(28 + k) for k in range(4)]
        assert base[2] - base[1] == 16384
        pre = Stream()
        pre.atom(f'''v_add_u32 {a}, {self.sLW}, {self.l16}''')
        for k in (1, 2, 3):
            pre.atom(f'''v_xor_b32 {ar[k-1]}, {k * 4096}, {a}
            v_add_u32 {ar[k-1]}, {base[k]}, {ar[k-1]}''')
        aw3 = V.alloc(3, 1)
        for k in (1, 2, 3): pre(f'v_add_u32 {aw3[k-1]}, {base[k]}, {a}')
        pre.atom(f'''s_lshl_b32 {self.sT2}, {self.sCOL}, 1
        s_add_u32 {self.sT2}, {self.sT2}, {self.sCG}
        s_lshl_b32 {self.sT2}, {self.sT2}, 6
        v_mul_u32_u24 {a}, 896, {self.row}
        v_add_u32 {a}, {self.sT2}, {a}
        v_lshrrev_b32 {t}, 5, {l}
        v_lshl_add_u32 {a}, {t}, 5, {a}''')
        for k in (1, 2, 3):
            for q in range(4): s(f'ds_write_b128 {aw3[k-1]}, {self.acc2[k].sub(4*q, 4)} offset:{q * 1024}')
        s('@waitlg\ns_barrier')
        for q in range(4):
            for k in (1, 2, 3): s(f'ds_read_b128 {self.acc2[k].sub(4*q, 4)}, {ar[k-1]} offset:{q * 1024}')
        b = self.acc2[0]
        for q in range(4):
            for h in range(2):
                r = 4*q + 2*h
                s(f'v_pk_add_f32 {b.sub(r, 2)}, {b.sub(r, 2)}, {self.acc2[1].sub(r, 2)}')
                s(f'v_pk_add_f32 {self.acc2[2].sub(r, 2)}, {self.acc2[2].sub(r, 2)}, {self.acc2[3].sub(r, 2)}')
            for h in range(2):
                r = 4*q + 2*h
                s(f'v_pk_add_f32 {b.sub(r, 2)}, {b.sub(r, 2)}, {self.acc2[2].sub(r, 2)}')
            for h in range(2):
                r = 4*q + 2*h
                s(f'v_pk_fma_f32 {b.sub(r, 2)}, {b.sub(r, 2)}, {self.gg}, {self.ga.sub(r, 2)} op_sel:[0,1,0] op_sel_hi:[1,1,1]')
            for h in range(2):
                r = 4*q + 2*h
                s(f'v_cvt_pk_bf16_f32 {o[r // 2]}, {b[r]}, {b[r + 1]}')
            if q % 2 == 1:
                s(f'buffer_store_dwordx4 {o.sub(4*(q // 2), 4)}, {a}, s[56:59], 0 offen offset:{16 * (q // 2)}')
        V.free(a, ar, o, t, aw3)
        return pre, s

    def helper_touch(self, s, V): pass
    def helper(self):
        s = Stream(); l = self.lane; W = self.sW
        V = Regs('v', 256, 8); T = 's3'; T2 = 's95'
        s('@forget\nL_helper:')
        r8 = V.alloc(); c8 = V.alloc(); t = V.alloc(); t2 = V.alloc(); vx = V.alloc(2); zero = V.alloc(); fo = V.alloc()
        s(f'''
        v_lshrrev_b32 {r8}, 3, {l}
        v_and_b32 {c8}, 7, {l}
        v_lshrrev_b32 {t2}, 4, {l}
        s_lshl_b32 {T}, s2, 2
        s_add_u32 {T}, {T}, {W}
        s_mul_i32 {T}, {T}, {16*896}
        v_mul_u32_u24 {t}, 896, {r8}
        v_add_u32 {t}, {T}, {t}
        v_xor_b32 {t2}, {c8}, {t2}
        v_lshl_add_u32 {vx[0]}, {t2}, 4, {t}
        v_xor_b32 {t2}, 4, {t2}
        v_lshl_add_u32 {vx[1]}, {t2}, 4, {t}
        v_add_u32 {vx[1]}, {8*896 - 1024}, {vx[1]}
        v_mov_b32 {zero}, 0
        s_mul_i32 {T}, s2, {84*128}
        s_add_u32 {T}, {T}, {FHOFF}
        v_lshl_add_u32 {fo}, v0, 7, {T}
        v_mov_b32 {t}, 0x7fffff00
        v_cmp_gt_u32 vcc, 84, v0
        v_cndmask_b32 {fo}, {t}, {fo}, vcc
        s_waitcnt lgkmcnt(0)''')
        self.srd(s, 40, 's4', 's5', 2048 * 896)
        self.srd(s, 52, 's36', 's37', WSB)
        s(f's_lshl_b32 {T2}, {W}, 11')
        for c in range(7):
            s(f'''s_add_u32 m0, {T2}, {c * 8192}
            s_mov_b32 {T}, {c * 128}
            buffer_load_dwordx4 {vx[0]}, s[40:43], {T} offen lds
            buffer_load_dwordx4 {vx[1]}, s[40:43], {T} offen offset:1024 lds''', tag='hx')
        s(f'buffer_store_dword {zero}, {fo}, s[52:55], 0 offen sc1')
        if not self.opt.get('notouch'): self.helper_touch(s, V)
        xs = V.alloc(56, 2); gs = V.alloc(56, 2); go = V.alloc(); xo = V.alloc()
        s(f'''v_and_b32 {go}, 3, v0
        v_lshlrev_b32 {go}, 4, {go}
        v_lshrrev_b32 {t}, 2, v0
        v_mul_u32_u24 {xo}, 896, {t}
        v_add_u32 {xo}, {xo}, {go}
        s_mul_i32 {T}, s2, {64*896}''')
        for j in range(14):
            s(f'buffer_load_dwordx4 {xs.sub(4*j, 4)}, {xo}, s[40:43], {T} offen offset:{64*j}')
            s(f'global_load_dwordx4 {gs.sub(4*j, 4)}, {go}, s[30:31] offset:{64*j}')
        a = V.alloc(); uo = V.alloc(); ub = V.alloc(56, 2)
        s(f'''
        v_bfe_u32 {t}, {l}, 2, 2              ; i>>2
        v_lshrrev_b32 {t2}, 4, {l}            ; rho
        v_lshl_add_u32 {a}, {t}, 2, {t2}
        v_lshlrev_b32 {a}, 7, {a}             ; row*128
        v_lshrrev_b32 {r8}, 5, {l}
        v_lshl_add_u32 {t}, {t}, 1, {r8}      ; swz
        v_bfe_u32 {c8}, {l}, 1, 1
        s_lshl_b32 {T}, {W}, 1
        v_add_u32 {c8}, {T}, {c8}
        v_xor_b32 {t}, {t}, {c8}
        v_lshl_add_u32 {a}, {t}, 4, {a}
        v_and_b32 {t}, 1, {l}
        v_lshl_add_u32 {a}, {t}, 3, {a}
        v_and_b32 {t}, 15, {l}
        v_lshlrev_b32 {uo}, 12, {t}
        v_lshl_add_u32 {uo}, {t2}, 4, {uo}
        s_lshl_b32 {T}, {W}, 16
        s_lshl_b32 {T2}, s2, 7
        s_add_u32 {T2}, {T2}, {T}
        s_add_u32 {T2}, {T2}, {UOFF}
        @waitvm hx
        s_barrier''')
        for n in range(7):
            for A in range(2):
                for tt in range(2):
                    s(f'ds_read_b64_tr_b16 {ub.sub(8*n + 4*A + 2*tt, 2)}, {a} offset:{n*8192 + A*4096 + tt*2048}')
        for n in range(7):
            s(f's_add_u32 {T}, {T2}, {n * 64 * 4096}')
            for A in range(2):
                s(f'buffer_store_dwordx4 {ub.sub(8*n + 4*A, 4)}, {uo}, s[52:55], {T} offen offset:{64*A} sc1')
        one = V.alloc()
        s(f'''v_mov_b32 {one}, 1
        s_lshl_b32 {T}, s2, 2
        v_mov_b32 {fo}, {T}
        s_waitcnt vmcnt(0)
        s_barrier''')
        s.atom(f'''s_cmp_eq_u32 {W}, 0
        s_cbranch_scc0 L_h1
        s_mov_b64 exec, 1
        global_store_dword {fo}, {one}, s[34:35] sc1
        s_mov_b64 exec, -1
        L_h1:''')
        acc = V.alloc(2); p = V.alloc(8)
        s(f'v_mov_b32 {acc[0]}, 0\nv_mov_b32 {acc[1]}, 0')
        for j in range(0, 56, 2):
            for h in range(2):
                x, g = xs[j + h], gs[j + h]; q = p.sub(4*h, 4)
                s(f'''v_lshlrev_b32 {q[0]}, 16, {x}
                v_and_b32 {q[1]}, 0xffff0000, {x}
                v_lshlrev_b32 {q[2]}, 16, {g}
                v_and_b32 {q[3]}, 0xffff0000, {g}''')
            for h in range(2):
                q = p.sub(4*h, 4)
                s(f'v_pk_mul_f32 {q.sub(0, 2)}, {q.sub(0, 2)}, {q.sub(2, 2)}')
            for h in range(2):
                q = p.sub(4*h, 4)
                s(f'v_cvt_pk_bf16_f32 {q[2]}, {q[0]}, {q[1]}')
            for h in range(2):
                q = p.sub(4*h, 4)
                s(f'''v_lshlrev_b32 {q[0]}, 16, {q[2]}
                v_and_b32 {q[1]}, 0xffff0000, {q[2]}''')
            for h in range(2):
                q = p.sub(4*h, 4)
                s(f'v_pk_add_f32 {acc}, {acc}, {q.sub(0, 2)}')
        s(f'''v_add_f32 {acc[0]}, {acc[0]}, {acc[1]}
        v_add_f32_dpp {acc[0]}, {acc[0]}, {acc[0]} quad_perm:[1,0,3,2] row_mask:0xf bank_mask:0xf
        v_add_f32_dpp {acc[0]}, {acc[0]}, {acc[0]} quad_perm:[2,3,0,1] row_mask:0xf bank_mask:0xf
        v_cvt_pk_bf16_f32 {t}, {acc[0]}, {acc[0]}
        v_lshlrev_b32 {t}, 16, {t}
        v_mul_f32 {t}, {f2h(-LOG2E)}, {t}
        v_exp_f32 {t}, {t}
        v_add_f32 {t}, 1.0, {t}
        v_rcp_f32 {t}, {t}
        v_cvt_pk_bf16_f32 {t}, {t}, {t}
        v_lshlrev_b32 {acc[0]}, 16, {t}
        v_sub_f32 {t}, 1.0, {acc[0]}
        v_cvt_pk_bf16_f32 {t}, {t}, {t}
        v_lshlrev_b32 {acc[1]}, 16, {t}
        v_lshrrev_b32 {t}, 2, v0
        v_lshlrev_b32 {t}, 3, {t}
        s_lshl_b32 {T}, s2, 9
        s_add_u32 {T}, {T}, {GOFF}
        s_mov_b32 exec_lo, 0x11111111
        s_mov_b32 exec_hi, 0x11111111
        buffer_store_dwordx2 {acc}, {t}, s[52:55], {T} offen sc1
        s_mov_b64 exec, -1
        s_waitcnt vmcnt(0)
        s_barrier''')
        s.atom(f'''s_cmp_eq_u32 {W}, 0
        s_cbranch_scc0 L_h2
        s_mov_b64 exec, 1
        global_store_dword {fo}, {one}, s[34:35] offset:128 sc1
        s_mov_b64 exec, -1
        L_h2:''')
        if self.opt.get('stamps'):
            self.nstamp = 10; self.stamp(s); self.stamp(s, real=True)
            sv = self.V; self.V = V; self.stamp_out(s); self.V = sv
        s('s_endpgm')
        return s

    def build(self):
        V = self.V; A = self.A; o = self.opt
        m = Stream()
        m.add(self.entry()); m.add(self.prologue()); m.add(self.addrs())
        self.stamp(m, 'pro')
        m.add(self.kgen())
        V.free(self.pfreg)
        self.stamp(m, 'kgen')
        pre, p0, p1 = self.gemm1()
        m.add(pre); m.add(p0)
        self.stamp(m, 'p0')
        f1 = Stream()
        f1.add(self.dbg_load(0)); f1.add(self.epi(0)); f1.add(self.u_fetch())
        f2 = Stream(); f2.add(self.hflag(0)); f2.add(self.u_put())
        m.add(f1)
        m.add(weave(p1, f2, start=40, stop=90))
        self.stamp(m, 'p1')
        V.free(*self.acc[0])
        A.free(self.Xr, *self.Wf)
        self.Hf = A.alloc(112, 4); D0 = A.alloc(112, 4); D1 = [A.alloc(16, 4), A.alloc(16, 4)]
        m('@waitlg\ns_barrier')
        m.add(self.dma(28))
        m.add(self.hpoll_load(0))
        m.add(self.epi(1))
        V.free(*self.acc[1])
        self.stamp(m, 'epi1')
        m.add(self.h_loads(0))
        for n in range(7):
            m.add(self.d_reads(0, n, D0.sub(16*n, 16)))
            if n < 6:
                m(f'@waitlg dr{21 + n}'); m.add(self.dma(29 + n))
        m.add(self.hflag(1))
        m.add(self.conv())
        self.stamp(m, 'conv')
        c1, c2 = self.convpost()
        m.add(c1); m('@waitlg\ns_barrier'); m.add(c2)
        m.add(self.dbg_load(1))
        self.acc2 = [V.alloc(16, 4) for _ in range(4)]
        for n in range(7): m.add(self.g2_mfma(0, n, D0.sub(16*n, 16)))
        m.add(self.aflag())
        m.add(self.g_fetch())
        m.add(self.hpoll_load(1))
        self.stamp(m, 'g2a')
        m.add(self.h_loads(1))
        m.add(self.a_poll_load())
        m.add(self.d_reads(1, 0, D1[0]))
        for n in range(7):
            if n < 6: m.add(self.d_reads(1, n + 1, D1[(n + 1) % 2]))
            m.add(self.g2_mfma(1, n, D1[n % 2]))
        self.stamp(m, 'g2b')
        m.add(self.a_fetch()); m.add(self.a_prep())
        pre, fin = self.final()
        m.add(pre); m.add(fin)
        self.stamp(m, 'end'); self.stamp(m, real=True)
        self.stamp_out(m)
        m('s_endpgm')
        m.add(self.cold)
        m.add(self.helper())
        m('L_end:\ns_endpgm')
        k = K(KN + '_kernel', vgpr=256, agpr=256)
        k.lines = finalize2(m, not o.get('noalign'))
        txt = build([k], [(KN + '_kernel', 256, 256, 163840)])
        if o.get('stamps'): txt = '; stamps: ' + ' '.join(self.names) + '\n' + txt
        return txt

if __name__ == '__main__':
    opt = dict(a.split('=') if '=' in a else (a, 1) for a in sys.argv[2:])
    open(sys.argv[1], 'w').write(Gen(opt).build())
```

```python
import sys
from gen import *

class Gen2(Gen):
    def iopt(self, n, d): return int(self.opt.get(n, d))
    def stamp(self, s, name=None, real=False):
        if not self.opt.get('trace'): return
        if real: s(f's_memrealtime s[{96 if name == "s" else 4}:{97 if name == "s" else 5}]')
        elif self.opt['trace'] == 1 or name in ('st', 'end') or any(name.startswith(x) for x in self.opt['trace'].split(',')): s(f'@tr {name}')
    def stamp_out(self, s):
        if not self.opt.get('trace'): return
        s(f'''@trend
        @waitall
        v_writelane_b32 v255, s96, 62
        v_writelane_b32 v255, s4, 63
        s_lshl2_add_u32 s3, s2, {self.sW}
        s_lshl_b32 s3, s3, 8
        s_add_u32 s3, s3, {TOFF}
        v_lshlrev_b32 v254, 2, {self.lane}
        buffer_store_dword v255, v254, s[52:55], s3 offen''')
    def prologue(self):
        s = Stream(); V = self.V; S = self.S; l = self.lane; W = self.sW
        sM = self.sM = S.alloc(); sRB = self.sRB = S.alloc(); sCB = self.sCB = S.alloc()
        sCOL = self.sCOL = S.alloc(); sR64 = self.sR64 = S.alloc()
        sRG = self.sRG = S.alloc(); sCG = self.sCG = S.alloc()
        sT = self.sT = S.alloc(); sT2 = self.sT2 = S.alloc(); self.sLW = S.alloc()
        XO = self.sXO = S.alloc(7, 1); self.sDM = S.alloc()
        po = V.alloc()
        s(f'''
        s_sub_u32 {sM}, s2, 32
        s_lshl_b32 {sT}, {sM}, 10
        v_lshl_add_u32 {po}, v0, 2, {sT}
        s_lshr_b32 {sT}, {sM}, 3            ; j
        s_and_b32 {sT2}, {sM}, 6
        s_lshl_b32 {sRB}, {sT2}, 1
        s_and_b32 {sT2}, {sT}, 3
        s_add_u32 {sRB}, {sRB}, {sT2}       ; rb
        s_lshr_b32 {sCOL}, {sT}, 2          ; col
        s_and_b32 {sR64}, {sM}, 7
        s_lshl2_add_u32 {sR64}, {sR64}, {sT2}
        s_lshl1_add_u32 {sT}, {sT2}, {sCOL}
        s_lshl_b32 {sT}, {sT}, 7
        ''')
        if self.opt.get('norot'): s(f's_mov_b32 {sT}, 0')
        for c in range(7):
            s(f'''s_cmp_ge_u32 {sT}, 896
            s_cselect_b32 {sT2}, 896, 0
            s_sub_u32 {XO[c]}, {sT}, {sT2}''')
            if c == 1: break
            s(f's_add_u32 {sT}, {XO[c]}, 128')
        s(f'''
        s_and_b32 {sT2}, {sM}, 1
        s_mul_i32 {sCB}, {sT2}, 7
        s_add_u32 {sCB}, {sCB}, {sCOL}      ; cb
        s_lshr_b32 {sRG}, {W}, 1
        s_and_b32 {sCG}, {W}, 1
        s_lshl_b32 {self.sLW}, {W}, 12
        ''')
        vx = self.vx = V.alloc(4); vw = self.vw = V.alloc(4); vd = self.vd = V.alloc(4)
        r8 = V.alloc(); c8 = V.alloc(); g4 = V.alloc(); t = V.alloc(); t2 = V.alloc()
        s(f'''
        v_lshrrev_b32 {r8}, 3, {l}
        v_and_b32 {c8}, 7, {l}
        v_lshrrev_b32 {g4}, 4, {l}
        s_lshl2_add_u32 {sT}, {sRB}, {W}
        s_mul_i32 {sT}, {sT}, {32*896}
        v_mul_u32_u24 {t}, 896, {r8}
        v_add_u32 {t}, {sT}, {t}
        v_xor_b32 {t2}, {c8}, {g4}
        v_lshl_add_u32 {vx[0]}, {t2}, 4, {t}
        v_xor_b32 {t2}, 4, {t2}
        v_lshl_add_u32 {vx[1]}, {t2}, 4, {t}
        v_add_u32 {vx[2]}, {2*(8*896-1024)}, {vx[0]}
        v_add_u32 {vx[3]}, {3*(8*896-1024)}, {vx[1]}
        v_add_u32 {vx[1]}, {8*896-1024}, {vx[1]}
        v_and_b32 {t2}, 1, {g4}
        v_lshlrev_b32 {t2}, 2, {t2}
        v_xor_b32 {t2}, {c8}, {t2}
        s_mul_i32 {sT}, {sCG}, {32*3584}
        s_lshl_b32 {sT2}, {sCB}, 8
        s_add_u32 {sT}, {sT}, {sT2}
        v_mul_u32_u24 {t}, 3584, {r8}
        v_add_u32 {t}, {sT}, {t}
        v_lshl_add_u32 {vw[0]}, {t2}, 4, {t}
        v_add_u32 {vw[1]}, {1*(8*3584-1024)}, {vw[0]}
        v_add_u32 {vw[2]}, {2*(8*3584-1024)}, {vw[0]}
        v_add_u32 {vw[3]}, {3*(8*3584-1024)}, {vw[0]}
        s_mov_b32 s42, {2048*896}
        s_mov_b32 s43, 0x20000
        s_mov_b32 s46, {448*3584}
        s_mov_b32 s47, 0x20000
        s_lshl_b32 {sT}, {sM}, 2
        s_cmp_eq_u32 {sRG}, 0
        ''')
        self.par = V.alloc(6)
        self.sLD = S.alloc(); self.sDS = S.alloc()
        s('@waitlg')
        self.stamp(s, 'karg')
        for n in range(6):
            s(f'global_load_dword {self.par[n]}, {po}, s[{6+2*n}:{7+2*n}]')
        s(f'''s_load_dword {self.sLD}, s[18:19], {sT}
        s_load_dword {self.sDS}, s[20:21], {sT}
        s_cselect_b32 s44, s24, s26
        s_cselect_b32 s45, s25, s27
        s_and_b32 s45, s45, 0xffff
        s_mov_b32 s40, s4
        s_and_b32 s41, s5, 0xffff''')
        V.free(po)
        head = s; s = Stream()
        for c in range(2, 7):
            s.atom(f'''s_add_u32 {sT}, {XO[c-1]}, 128
            s_cmp_ge_u32 {sT}, 896
            s_cselect_b32 {sT2}, 896, 0
            s_sub_u32 {XO[c]}, {sT}, {sT2}''')
        s(f'''s_lshl_b32 {sT}, {sCOL}, 7
        v_mul_u32_u24 {t}, 896, {r8}
        v_add_u32 {t}, {sT}, {t}
        v_lshl_add_u32 {vd[0]}, {t2}, 4, {t}
        v_add_u32 {vd[1]}, {1*(8*896-1024)}, {vd[0]}
        v_add_u32 {vd[2]}, {2*(8*896-1024)}, {vd[0]}
        v_add_u32 {vd[3]}, {3*(8*896-1024)}, {vd[0]}
        ''')
        V.free(r8, c8, g4, t, t2)
        self.srd(s, 48, 's28', 's29', 1792 * 896)
        self.srd(s, 52, 's36', 's37', WSB)
        self.srd(s, 56, 's32', 's33', 2048 * 896)
        for i in range(24, 34): S.free_[i] = True
        self.sDU = S.alloc(7, 1)
        for n in range(7):
            s(f'''s_mul_i32 {sT}, {W}, 7
            s_lshr_b32 {sT2}, {XO[n]}, 7
            s_add_u32 {sT}, {sT}, {sT2}
            s_lshr_b32 {sT2}, {sT}, 1
            s_and_b32 {sT}, {sT}, 1
            s_lshl2_add_u32 {sT}, {sT2}, {sT}
            s_mul_i32 {self.sDU[n]}, {sT}, {32*896}''')
        return head, s

    def dma(self, it, split=False):
        s = Stream(); sT = self.sDM; pre = ''
        if it < 14 and it % 2 == 0:
            v, srd, so = self.vx, 's[40:43]', self.sXO[it // 2]
        elif it < 21:
            c = it // 2 if it < 14 else it - 14
            v, srd, so = self.vw, 's[44:47]', sT
            pre = f's_mul_i32 {sT}, {self.sXO[c]}, 1792\n'
        else:
            v, srd, so = self.vd, 's[48:51]', self.sDU[(it - 21) % 7]
            if it >= 28:
                pre = f's_add_u32 {sT}, {so}, {64*896}\n'; so = sT
        if it == 14:
            for i in range(4): s(f'v_add_u32 {v[i]}, 128, {v[i]}')
        hd = f's_add_u32 m0, {self.sLW}, {slot(it)}\n{pre}'
        ld = [f'buffer_load_dwordx4 {v[i]}, {srd}, {so} offen offset:{1024 * i} lds' for i in range(4)]
        if split:
            s.atom(hd)
            for x in ld: s(x, tag=f'it{it}')
        else: s.atom(hd + '\n'.join(ld), tag=f'it{it}')
        return s

    def misc_addrs(self):
        s = Stream(); V = self.V; S = self.S; l = self.lane; sT = self.sT; sT2 = self.sT2
        self.one = V.alloc(); self.fl = V.alloc(); self.fa = V.alloc()
        self.c1 = V.alloc(2); self.c0 = V.alloc(2); self.sH = S.alloc(); self.sFH = S.alloc()
        c0 = -2 * 0.7978845608028654 * LOG2E
        self.sHC = S.alloc(); self.fh = V.alloc(); self.hv = V.alloc(2)
        s(f'''v_mov_b32 {self.one}, 1
        v_and_b32 {self.fa}, 31, {l}
        v_lshlrev_b32 {self.fa}, 2, {self.fa}
        v_mov_b32 {self.c1[0]}, {f2h(c0 * 0.044715)}
        v_mov_b32 {self.c1[1]}, {f2h(c0 * 0.044715)}
        v_mov_b32 {self.c0[0]}, {f2h(c0)}
        v_mov_b32 {self.c0[1]}, {f2h(c0)}
        s_lshl1_add_u32 {self.sH}, {self.sRB}, {self.sRG}
        s_mul_i32 {self.sH}, {self.sH}, 28
        s_add_u32 {self.sH}, {self.sH}, {self.sCB}
        s_lshl1_add_u32 {self.sH}, {self.sH}, {self.sCG}
        s_lshl_b32 {self.sFH}, {self.sH}, 7
        s_add_u32 {self.sFH}, {self.sFH}, {FHOFF}
        s_lshl_b32 {self.sH}, {self.sH}, 12
        s_mul_i32 {self.sHC}, {self.sR64}, 56
        s_mul_i32 {sT2}, {self.sW}, 7
        s_add_u32 {self.sHC}, {self.sHC}, {sT2}
        s_lshl_b32 {sT2}, {self.sHC}, 7
        s_add_u32 {sT2}, {sT2}, {FHOFF}
        v_min_u32 {self.fh}, 6, {l}
        v_lshl_add_u32 {self.fh}, {self.fh}, 7, {sT2}
        s_lshl_b32 {self.sHC}, {self.sHC}, 12
        s_lshl_b32 {sT2}, {self.sRG}, 11
        s_add_u32 {sT2}, {sT2}, {self.sHC}
        v_add_u32 {self.hv[0]}, {sT2}, {self.l16}
        v_xor_b32 {self.hv[1]}, 0x800, {self.hv[0]}''')
        S.free(self.sHC)
        return s

    def kgen(self):
        s = Stream(); V = self.V; S = self.S; l = self.lane; sT = self.sT; sT2 = self.sT2
        dt = V.alloc(2); acc = self.kacc = V.alloc(16, 4); af = V.alloc(); sSC = S.alloc()
        t = V.alloc(); hl = V.alloc()
        s(f'''
        s_mul_i32 {sSC}, {self.sW}, 8704
        s_add_u32 {sSC}, {sSC}, {L_S}
        v_and_b32 {t}, 31, {l}
        v_mul_u32_u24 {t}, 272, {t}
        v_lshrrev_b32 {hl}, 5, {l}
        v_lshl_add_u32 {t}, {hl}, 4, {t}
        v_add_u32 {af}, {sSC}, {t}
        s_mov_b32 m0, {sSC}
        s_lshl_b32 {sT}, {self.sRG}, 4
        v_mov_b32 {t}, {f2h(LOG2E)}''')
        self.stamp(s, 'pro')
        s(f'''
        s_lshr_b32 {self.sLD}, {self.sLD}, {sT}
        s_lshl_b32 {self.sLD}, {self.sLD}, 16
        s_lshr_b32 {self.sDS}, {self.sDS}, {sT}
        s_lshl_b32 {self.sDS}, {self.sDS}, 16
        v_mul_f32 {t}, {self.sLD}, {t}
        v_exp_f32 {t}, {t}
        v_cvt_pk_bf16_f32 {t}, {t}, {t}
        v_lshlrev_b32 {dt[0]}, 16, {t}
        v_lshlrev_b32 {dt[1]}, 16, {t}
        ''')
        P = V.alloc(6); tmp = V.alloc(16); cv = V.alloc(8)
        z = V.alloc(2); z2 = V.alloc(2); z4 = V.alloc(2); y8 = V.alloc(2)
        c = V.alloc(16); X = V.alloc(18); X2 = V.alloc(16)
        Fr = [[self.Xr.sub(96 + 64*u, 32), self.Xr.sub(128 + 64*u, 32)] for u in range(2)]
        hid = []
        self.kitems = self.korder_rest[:self.iopt('nk', 2)]
        dq = []
        for it in self.kitems:
            x = self.dma(it, True); dq += [(x[0], x[1], x[2]), (x[0], x[3], x[4])]
        kd0 = 15 - len(dq) - self.iopt('kd', 0)
        grp = [0]; pend = []
        def emit(lst, neg=False):
            if hid: s(hid.pop(0))
            if pend: s.append(pend.pop()); s(f's_mov_b32 m0, {sSC}')
            for n, (val, rows) in enumerate(lst): s(f'v_cvt_pk_bf16_f32 {cv[n]}, {val[0]}, {"-" if neg else ""}{val[1]}')
            for n, (val, rows) in enumerate(lst):
                for R in rows: s(f'ds_write_addtid_b32 {cv[n]} offset:{R * 272}')
            if grp[0] >= kd0 and dq:
                h, a, b = dq.pop(0); s.append([Ins(i.text) for i in h]); s.append(a); pend.append(b)
            grp[0] += 1
        cc = [c.sub(2*n, 2) for n in range(8)]
        XX = [X.sub(2*n, 2) for n in range(9)]; X2_ = [X2.sub(2*n, 2) for n in range(8)]
        for u in range(2):
            for n in range(6):
                s(f'v_lshlrev_b32 {P[n]}, 16, {self.par[n]}' if u == 0 else f'v_and_b32 {P[n]}, 0xffff0000, {self.par[n]}')
            self.stamp(s, f'k{u}a')
            A = P.sub(0, 2); B = P.sub(2, 2); C = P.sub(4, 2); y1 = cc[1]
            s(f'''v_pk_mul_f32 {A}, {A}, {dt}
            v_pk_mul_f32 {B}, {B}, {dt}
            v_mul_f32 {A[0]}, {f2h(LOG2E)}, {A[0]}
            v_mul_f32 {A[1]}, 0.15915494, {A[1]}
            v_mul_f32 {tmp[0]}, 0x41000000, {A[0]}
            v_mul_f32 {tmp[1]}, 0x41000000, {A[1]}
            v_rndne_f32 {tmp[2]}, {A[1]}
            v_rndne_f32 {tmp[3]}, {tmp[1]}
            v_exp_f32 {tmp[4]}, {tmp[0]}
            v_sub_f32 {tmp[1]}, {tmp[1]}, {tmp[3]}
            v_sub_f32 {A[1]}, {A[1]}, {tmp[2]}
            v_cos_f32 {y1[0]}, {tmp[1]}
            v_sin_f32 {y1[1]}, {tmp[1]}
            v_exp_f32 {tmp[6]}, {A[0]}
            v_cos_f32 {z[0]}, {A[1]}
            v_sin_f32 {z[1]}, {A[1]}
            v_mov_b32 {cc[0][0]}, 1.0
            v_mov_b32 {cc[0][1]}, 0
            v_pk_mul_f32 {y1}, {y1}, {tmp.sub(4, 2)} op_sel_hi:[1,0]
            v_pk_mul_f32 {z}, {z}, {tmp.sub(6, 2)} op_sel_hi:[1,0]
            ''')
            cm = lambda items: self.cmul_batch(s, items, tmp)
            cm([(cc[2], y1, y1), (XX[0], C, B), (z2, z, z)])
            cm([(cc[3], cc[2], y1), (cc[4], cc[2], cc[2]), (XX[1], XX[0], z), (z4, z2, z2), (XX[8], XX[0], y1)])
            cm([(cc[5], cc[4], y1), (cc[6], cc[4], cc[2]), (cc[7], cc[4], cc[3]), (y8, cc[4], cc[4])])
            emit([(cc[n], [n]) for n in range(8)])
            cm([(cc[n], cc[n], y8) for n in range(1, 8)])
            emit([(y8, [8])] + [(cc[n], [8 + n]) for n in range(1, 8)])
            cm([(cc[0], y8, y8)] + [(cc[n], cc[n], y8) for n in range(1, 8)])
            emit([(cc[n], [16 + n]) for n in range(8)])
            Vv = z
            cm([(Vv, cc[0], cc[0])])
            cm([(cc[n], cc[n], y8) for n in range(8)])
            emit([(cc[n], [24 + n]) for n in range(8)])
            self.stamp(s, f'k{u}b')
            for st in range(8): s(f'ds_read_b128 {Fr[u][0].sub(4*st, 4)}, {af} offset:{32 * st}')
            cm([(XX[2], XX[0], z2), (XX[3], XX[1], z2), (XX[4], XX[0], z4), (XX[5], XX[1], z4)])
            cm([(XX[6], XX[2], z4), (XX[7], XX[3], z4)])
            emit([(XX[n], [n]) for n in range(8)], True)
            cm([(XX[n], XX[n], Vv) for n in (0, 4, 8, 2, 6)])
            cm([(X2_[0], XX[0], Vv), (X2_[1], XX[4], Vv), (X2_[2], XX[8], Vv)])
            emit([(XX[0], [8]), (XX[4], [10, 12]), (XX[8], [14]), (XX[2], [9]), (XX[6], [13]), (X2_[0], [16]), (X2_[1], [17]), (X2_[2], [18])], True)
            cm([(XX[0], X2_[0], Vv), (XX[1], X2_[1], Vv), (XX[2], X2_[2], Vv)])
            cm([(X2_[0], XX[0], Vv), (X2_[1], XX[2], Vv)])
            emit([(XX[0], [20]), (XX[1], [21]), (XX[2], [22]), (X2_[0], [24]), (X2_[1], [25])], True)
            for h in range(1, 4): cm([(X2_[2*h], X2_[2*h - 2], Vv), (X2_[2*h + 1], X2_[2*h - 1], Vv)])
            emit([(X2_[n], [24 + n]) for n in range(2, 8)], True)
            self.stamp(s, f'k{u}c')
            for st in range(8): s(f'ds_read_b128 {Fr[u][1].sub(4*st, 4)}, {af} offset:{32 * st}')
            assert not hid
            hid = [f'v_mfma_f32_32x32x16_bf16 {acc}, {Fr[u][1].sub(4*st, 4)}, {Fr[u][0].sub(4*st, 4)}, {acc if (u or st) else 0}' for st in range(8)]
        assert not dq and not pend
        V.free(P, z, z2, z4, y8, c, X, X2, self.par, dt, tmp, cv, af, t, hl); S.free(sSC)
        self.kmf = hid
        return s
    def kexch(self):
        V = self.V; l = self.lane; sT2 = self.sT2; acc = self.kacc
        s = Stream(); b = V.alloc(24, 2)
        keep = b.sub(0, 8); send = b.sub(8, 8); got = send; o = b.sub(16, 8)
        aw_ = V.alloc(); kq = V.alloc(); t = V.alloc(); hl = V.alloc(); msk = self.S.alloc(2, 2); sk = self.S.alloc()
        s.atom(f'''s_lshl_b32 {sT2}, {self.sW}, 11
        s_add_u32 {sT2}, {sT2}, {L_X}
        v_add_u32 {aw_}, {sT2}, {self.l16}''')
        s.atom(f'''s_cmp_eq_u32 {self.sCG}, 0
        s_cselect_b64 {msk}, -1, 0''')
        for n in range(8): s(f'v_cndmask_b32 {send[n]}, {acc[n]}, {acc[8 + n]}, {msk}')
        s.atom(f'''ds_write_b128 {aw_}, {send.sub(0, 4)}
        ds_write_b128 {aw_}, {send.sub(4, 4)} offset:1024''')
        for n in range(8): s(f'v_cndmask_b32 {keep[n]}, {acc[8 + n]}, {acc[n]}, {msk}')
        s(f'''v_xor_b32 {aw_}, 0x800, {aw_}
        s_mul_i32 {sk}, {self.sRG}, 4160
        s_add_u32 {sk}, {sk}, {L_K + 64}
        v_and_b32 {t}, 31, {l}
        v_lshl_add_u32 {kq}, {t}, 4, {sk}
        v_lshrrev_b32 {hl}, 5, {l}''')
        s2 = Stream()
        s2(f'''ds_read_b128 {got.sub(0, 4)}, {aw_}
        ds_read_b128 {got.sub(4, 4)}, {aw_} offset:1024''')
        s3 = Stream()
        for n in range(8): s3(f'v_add_f32 {keep[n]}, {keep[n]}, {got[n]}')
        L1 = self.lab('k1'); L2 = self.lab('k2')
        a1 = Stream(); a1.atom(f'''s_cmp_eq_u32 {self.sCG}, 0
        s_cbranch_scc0 {L1}
        v_cmp_eq_u32 vcc, 0, {l}
        v_mov_b32 {t}, {self.sDS}
        v_lshl_add_u32 {kq}, {hl}, 3, {kq}
        v_cndmask_b32 {t}, 0, {t}, vcc
        v_add_f32 {keep[0]}, {keep[0]}, {t}
        v_cvt_pk_bf16_f32 {o[0]}, {keep[0]}, {keep[1]}
        v_cvt_pk_bf16_f32 {o[1]}, {keep[2]}, {keep[3]}
        v_cvt_pk_bf16_f32 {o[2]}, {keep[4]}, {keep[4]}
        v_cvt_pk_bf16_f32 {o[3]}, {keep[5]}, {keep[6]}
        v_mov_b32 {o[4]}, 0
        v_and_b32 {t}, 15, {l}
        v_lshl_add_u32 {t}, {t}, 2, {sk}
        v_subrev_u32 {t}, 64, {t}
        ds_write_b64 {kq}, {o.sub(0, 2)}
        ds_write_b64 {kq}, {o.sub(2, 2)} offset:512
        ds_write_b32 {t}, {o[4]}
        s_branch {L2}''')
        a2 = Stream(); a2.atom(f'''{L1}:
        v_and_b32 {t}, 1, {l}
        v_cmp_eq_u32 vcc, 0, {t}
        v_lshl_add_u32 {t}, {hl}, 9, {kq}
        v_lshl_add_u32 {kq}, {hl}, 10, {kq}
        v_cvt_pk_bf16_f32 {o[0]}, {keep[0]}, {keep[0]}
        v_cvt_pk_bf16_f32 {o[1]}, {keep[0]}, {keep[1]}
        v_cvt_pk_bf16_f32 {o[2]}, {keep[1]}, {keep[1]}
        v_cvt_pk_bf16_f32 {o[3]}, {keep[2]}, {keep[2]}
        v_cndmask_b32 {keep[0]}, {keep[5]}, {keep[4]}, vcc
        v_cndmask_b32 {keep[1]}, {keep[7]}, {keep[6]}, vcc
        v_cvt_pk_bf16_f32 {o[4]}, {keep[4]}, {keep[4]}
        v_cvt_pk_bf16_f32 {o[5]}, {keep[4]}, {keep[4]}
        v_cvt_pk_bf16_f32 {o[6]}, {keep[0]}, {keep[5]}
        v_cvt_pk_bf16_f32 {o[7]}, {keep[5]}, {keep[5]}
        v_cvt_pk_bf16_f32 {got[0]}, {keep[6]}, {keep[6]}
        v_cvt_pk_bf16_f32 {got[1]}, {keep[6]}, {keep[6]}
        v_cvt_pk_bf16_f32 {got[2]}, {keep[1]}, {keep[7]}
        v_cvt_pk_bf16_f32 {got[3]}, {keep[7]}, {keep[7]}
        ds_write_b128 {t}, {o.sub(0, 4)} offset:1024
        ds_write_b128 {kq}, {o.sub(4, 4)} offset:2048
        ds_write_b128 {kq}, {got.sub(0, 4)} offset:2560
        {L2}:''', tag='nocount')
        s4 = Stream(); s4.append(a1[0] + a2[0])
        self.kx_free = lambda: (V.free(b, aw_, kq, t, hl, acc), self.S.free(msk, sk))
        self.kx_sfree = lambda: self.S.free(msk, sk)
        return s, s2, s3, s4

    def gemm1(self, sc):
        V = self.V
        sc.pre.add(self.g1_sync(0, 0)); sc.pre.add(self.g1_reads(0, 0))
        for x in self.kmf: sc.mfma(x)
        self.g0 = sc.n()
        self.refill = {}
        for p in range(2):
            for kk in range(28):
                c, ks = divmod(kk, 4)
                nxt = (p, kk + 1) if kk < 27 else ((1, 0) if p == 0 else None)
                buf = self.Wf[kk % len(self.Wf)]
                def mf(n):
                    rt, mat = divmod(n, 2); a = self.acc[p][n]
                    sc.mfma(f'v_mfma_f32_32x32x16_bf16 {a}, {buf.sub(4*mat, 4)}, {self.Xr.sub(8*kk + 4*rt, 4)}, {a if kk else 0}')
                rd = self.g1_reads(*nxt) if nxt else Stream()
                h = (len(rd) + 1) // 2
                mf(0)
                if ks == 3:
                    if nxt: sc.here().add(self.g1_sync(nxt[0], nxt[1] // 4))
                    else: sc.here()('@waitlg\ns_barrier')
                sc.here().add(rd[:h]); mf(1); sc.here().add(rd[h:]); mf(2); mf(3)
    def G(self, p, kk, n=0): return self.g0 + (p * 28 + kk) * 4 + n

    def epi(self, p, mode):
        V = self.V; out = []
        t = V.alloc(16, 2); o = self.eo = V.alloc(16, 2)
        nb = 4 if mode == 'woven' else 16
        for rt in range(2):
            G = self.acc[p][2*rt]; U = self.acc[p][2*rt + 1]
            for b in range(0, 16, nb):
                R = range(b, b + nb); P = range(b, b + nb, 2)
                s = Stream()
                if mode == 'woven':
                    for r in R: s(f'v_mul_f32 {t[r]}, {G[r]}, {G[r]}')
                    for r in R: s(f'v_fma_f32 {t[r]}, {t[r]}, {self.c1[0]}, {self.c0[0]}')
                    for r in R: s(f'v_mul_f32 {t[r]}, {G[r]}, {t[r]}')
                    for r in R:
                        s(f'v_exp_f32 {t[r]}, {t[r]}')
                        s(f'v_mul_f32 {U[r]}, {G[r]}, {U[r]}')
                else:
                    for r in P: s(f'v_pk_mul_f32 {t.sub(r, 2)}, {G.sub(r, 2)}, {G.sub(r, 2)}')
                    for r in P: s(f'v_pk_fma_f32 {t.sub(r, 2)}, {t.sub(r, 2)}, {self.c1}, {self.c0}')
                    for r in P: s(f'v_pk_mul_f32 {t.sub(r, 2)}, {G.sub(r, 2)}, {t.sub(r, 2)}')
                    for r in P: s(f'v_pk_mul_f32 {U.sub(r, 2)}, {G.sub(r, 2)}, {U.sub(r, 2)}')
                    out.append(('pk', s)); s = Stream()
                    for r in R: s(f'v_exp_f32 {t[r]}, {t[r]}')
                if mode == 'pk':
                    out.append(('v', s)); s = Stream()
                    for r in P: s(f'v_pk_add_f32 {t.sub(r, 2)}, {t.sub(r, 2)}, 1.0 op_sel_hi:[1,0]')
                    out.append(('pk', s)); s = Stream()
                    for r in R: s(f'v_rcp_f32 {t[r]}, {t[r]}')
                    out.append(('v', s)); s = Stream()
                    for r in P: s(f'v_pk_mul_f32 {U.sub(r, 2)}, {U.sub(r, 2)}, {t.sub(r, 2)}')
                    for r in P: s(f'v_cvt_pk_bf16_f32 {o[8*rt + r // 2]}, {U[r]}, {U[r + 1]}')
                    out.append(('pk', s))
                else:
                    for r in R: s(f'v_add_f32 {t[r]}, 1.0, {t[r]}')
                    for r in R: s(f'v_rcp_f32 {t[r]}, {t[r]}')
                    for r in R: s(f'v_mul_f32 {U[r]}, {U[r]}, {t[r]}')
                    for r in P: s(f'v_cvt_pk_bf16_f32 {o[8*rt + r // 2]}, {U[r]}, {U[r + 1]}')
                    out.append(('v', s))
        self.et = t
        return out
    def hstore(self, p):
        s = Stream()
        if p: s(f's_add_u32 {self.sH}, {self.sH}, {28 * 4096}')
        for q in range(4):
            s(f'buffer_store_dwordx4 {self.eo.sub(4*q, 4)}, {self.l16}, s[52:55], {self.sH} offen offset:{q * 1024} sc1', tag=f'hst{p}')
        return s
    def dbg_load(self, which):
        s = Stream()
        if which == 0:
            self.dbgld = f'global_load_dword {self.fl}, {self.fa}, s[34:35] sc1'
        else:
            s.atom(f'''s_lshl_b32 {self.sT2}, {self.sR64}, 2
            v_mov_b32 {self.fa}, {self.sT2}''')
            self.dbgld = f'global_load_dword {self.fl}, {self.fa}, s[34:35] offset:128 sc1'
        s(self.dbgld)
        return s
    def hpoll_load(self, p):
        s = Stream()
        self.hld = f'buffer_load_dword {self.fl}, {self.fh}, s[52:55], 0 offen offset:{p * 28 * 128} sc1'
        s(self.hld)
        return s
    def h_check(self, p):
        s = Stream()
        self.poll_check(s, self.hld, self.fl)
        if p:
            for rt in range(2): s(f'v_add_u32 {self.hv[rt]}, {28*4096}, {self.hv[rt]}')
        return s
    def h_loads(self, p, n):
        s = Stream()
        s(f's_lshl_b32 {self.sHO}, {self.sXO[n]}, 5')
        for fr in range(2):
            for rt in range(2):
                s(f'buffer_load_dwordx4 {self.Hf.sub(16*n + 8*fr + 4*rt, 4)}, {self.hv[rt]}, s[52:55], {self.sHO} offen offset:{fr * 1024} sc1')
        return s

    def conv(self, sc):
        F = self.cF
        def reads(r):
            o = Stream(); b = F[r % 2]
            for n in range(4):
                c = r + 8 * n
                for t in range(2):
                    o(f'ds_read_b64_tr_b16 {b.sub(4*n + 2*t, 2)}, {self.ak} offset:{128*c + 32*(1 - t)}')
                o(f'ds_read_b128 {b.sub(16 + 4*n, 4)}, {self.au} offset:{(16*n + 14 - 2*r) * 64}')
            return o
        first_reads = reads(0)
        order = [(0, 0), (0, 1), (1, 0), (0, 2), (1, 1), (2, 0), (0, 3), (1, 2), (2, 1), (3, 0)]
        for r in range(8):
            nx = reads(r + 1) if r < 7 else Stream()
            b = F[r % 2]; seen = set()
            for n, (i, d) in enumerate(order):
                z = self.Z[i + d]
                first = (r == 0 and (i + d) not in seen); seen.add(i + d)
                sc.mfma(f'v_mfma_f32_32x32x16_bf16 {z}, {b.sub(4*i, 4)}, {b.sub(16 + 4*d, 4)}, {0 if first else z}')
                lo = [0, 2, 3, 5, 6, 8, 9, 11, 12, 12, 12]
                sc.here().add(nx[lo[n]:lo[n + 1]])
        return first_reads
    def g2(self, sc, p, n, fr, sl):
        rt, dt = divmod(sl, 2); a = self.acc2[sl]
        return sc.mfma(f'v_mfma_f32_32x32x16_bf16 {a}, {self.D.sub(16*n + 8*fr + 4*dt, 4)}, {self.Hf.sub(16*n + 8*fr + 4*rt, 4)}, {a if (p or n or fr) else 0}')

    def final(self):
        V = self.V; l = self.lane
        a = V.alloc(); ar = V.alloc(3, 1); o = V.alloc(8, 2); t = V.alloc(); aw3 = V.alloc(3, 1)
        base = [slot(28 + k - 1) for k in range(4)]
        pre = Stream()
        pre(f'v_add_u32 {a}, {self.sLW}, {self.l16}')
        for k in (1, 2, 3):
            pre(f'''v_xor_b32 {ar[k-1]}, {k * 4096}, {a}
            v_add_u32 {ar[k-1]}, {base[k]}, {ar[k-1]}
            v_add_u32 {aw3[k-1]}, {base[k]}, {a}''')
        pre.atom(f'''s_lshl1_add_u32 {self.sT2}, {self.sCOL}, {self.sCG}
        s_lshl_b32 {self.sT2}, {self.sT2}, 6
        v_mul_u32_u24 {a}, 896, {self.row}
        v_add_u32 {a}, {self.sT2}, {a}''')
        pre(f'''v_lshrrev_b32 {t}, 5, {l}
        v_lshl_add_u32 {a}, {t}, 5, {a}''')
        wr = {}
        for k in (1, 2, 3):
            wr[k] = Stream()
            for q in range(4): wr[k](f'ds_write_b128 {aw3[k-1]}, {self.acc2[k].sub(4*q, 4)} offset:{q * 1024}')
        s = Stream()
        s('@waitlg\ns_barrier')
        for q in range(4):
            for k in (1, 2, 3): s(f'ds_read_b128 {self.acc2[k].sub(4*q, 4)}, {ar[k-1]} offset:{q * 1024}')
        s2 = Stream(); b = self.acc2[0]
        for q in range(4):
            for h in range(2):
                r = 4*q + 2*h
                s2(f'v_pk_add_f32 {b.sub(r, 2)}, {b.sub(r, 2)}, {self.acc2[1].sub(r, 2)}')
            for h in range(2):
                r = 4*q + 2*h
                s2(f'v_pk_add_f32 {b.sub(r, 2)}, {b.sub(r, 2)}, {self.acc2[2].sub(r, 2)}')
            for h in range(2):
                r = 4*q + 2*h
                s2(f'v_pk_add_f32 {b.sub(r, 2)}, {b.sub(r, 2)}, {self.acc2[3].sub(r, 2)}')
            for h in range(2):
                r = 4*q + 2*h
                s2(f'v_pk_fma_f32 {b.sub(r, 2)}, {b.sub(r, 2)}, {self.gg}, {self.ga.sub(r, 2)} op_sel:[0,1,0] op_sel_hi:[1,1,1]')
            for h in range(2):
                r = 4*q + 2*h
                s2(f'v_cvt_pk_bf16_f32 {o[r // 2]}, {b[r]}, {b[r + 1]}')
            if q % 2 == 1:
                s2(f'buffer_store_dwordx4 {o.sub(4*(q // 2), 4)}, {a}, s[56:59], 0 offen offset:{16 * (q // 2)} {self.opt.get("ost", "")}')
        return pre, wr, s, s2

    def st(self, name):
        s = Stream(); self.stamp(s, name); return s

    def entry(self):
        s = Stream(); V = self.V; S = self.S
        self.stamp(s, 's', real=True); self.stamp(s, 'st')
        if self.opt.get('trace'): V.free_[255] = False; s('v_mov_b32 v255, 0')
        self.lane = V.alloc(); self.sW = S.alloc()
        t = V.alloc(); t2 = V.alloc()
        s(f'''
        s_load_dwordx16 s[4:19], s[0:1], 0
        s_load_dwordx16 s[20:35], s[0:1], 64
        s_load_dwordx2 s[36:37], s[0:1], 128
        s_cmp_ge_u32 s2, 256
        s_cbranch_scc1 L_end
        s_getpc_b64 s[38:39]
        L_pc:
        s_lshr_b32 s3, s2, 3
        v_lshrrev_b32 {t}, 4, v0
        v_lshl_add_u32 {t}, {t}, 5, s3
        v_lshlrev_b32 {t}, 7, {t}
        v_min_u32 {t}, L_end-L_pc, {t}
        global_load_dword {t2}, {t}, s[38:39]
        v_lshrrev_b32 {t}, 6, v0
        v_and_b32 {self.lane}, 63, v0
        v_readfirstlane_b32 {self.sW}, {t}
        s_cmp_lt_u32 s2, 32
        s_cbranch_scc1 L_helper
        ''')
        V.free(t)
        self.pfreg = t2
        return s

    def helper(self):
        s = Stream(); l = self.lane; W = self.sW
        V = Regs('v', 256, 8); T = 's3'; T2 = 's95'; T3 = 's94'
        hst = [0]
        def stamp():
            if self.opt.get('trace'): s(f'@tr h{hst[0]}'); hst[0] += 1
        s('@forget\n@trreset\nL_helper:')
        r8 = V.alloc(); c8 = V.alloc(); t = V.alloc(); t2 = V.alloc(); vx = V.alloc(2); zero = V.alloc(); fo = V.alloc(); to = V.alloc(); tw = V.alloc(); fg = V.alloc(); d = V.alloc(4)
        touch = not self.opt.get('notouch')
        s(f'''
        v_lshrrev_b32 {r8}, 3, {l}
        v_and_b32 {c8}, 7, {l}
        v_lshrrev_b32 {t2}, 4, {l}
        s_and_b32 {T}, s2, 7
        s_lshr_b32 {T2}, s2, 3
        s_lshl2_add_u32 {T3}, {T}, {T2}
        s_lshr_b32 {T}, {T}, 1
        s_lshl2_add_u32 {T}, {T}, {T2}        ; hid
        s_mul_i32 {T}, {T}, {28*3584}
        s_and_b32 {T2}, s2, 1
        s_mul_i32 {T2}, {T2}, {7*256}
        s_add_u32 {T}, {T}, {T2}
        v_min_u32 {to}, 195, v0
        v_mul_u32_u24 {tw}, 9363, {to}
        v_lshrrev_b32 {tw}, 16, {tw}
        v_mul_u32_u24 {tw}, {3584 - 7*256}, {tw}
        v_lshl_add_u32 {tw}, {to}, 8, {tw}
        v_add_u32 {tw}, {T}, {tw}
        s_lshl2_add_u32 {T}, {T3}, {W}
        s_mul_i32 {T}, {T}, {16*896}
        v_mul_u32_u24 {t}, 896, {r8}
        v_add_u32 {t}, {T}, {t}
        v_xor_b32 {t2}, {c8}, {t2}
        v_lshl_add_u32 {vx[0]}, {t2}, 4, {t}
        v_xor_b32 {t2}, 4, {t2}
        v_lshl_add_u32 {vx[1]}, {t2}, 4, {t}
        v_add_u32 {vx[1]}, {8*896 - 1024}, {vx[1]}
        s_lshl_b32 {T2}, {W}, 11
        s_waitcnt lgkmcnt(0)''')
        stamp()
        if self.opt.get('hwait'): s(f'v_mov_b32 {zero}, 0\nglobal_load_dword {d[2]}, {zero}, s[30:31]\ns_waitcnt vmcnt(0)')
        if touch:
            s(f'''global_load_dword {d[0]}, {tw}, s[24:25] offset:128
            global_load_dword {d[1]}, {tw}, s[26:27] offset:128''')
        self.srd(s, 40, 's4', 's5', 2048 * 896)
        for c in range(7):
            s(f'''s_add_u32 m0, {T2}, {c * 8192}
            s_mov_b32 {T}, {c * 128}
            buffer_load_dwordx4 {vx[0]}, s[40:43], {T} offen lds
            buffer_load_dwordx4 {vx[1]}, s[40:43], {T} offen offset:1024 lds''', tag='hx')
        stamp()
        self.srd(s, 52, 's36', 's37', WSB)
        a = V.alloc(); uo = V.alloc(); ub = V.alloc(56, 2); bw = V.alloc(); br = V.alloc()
        B0 = 65536
        s(f'''
        v_mov_b32 {zero}, 0
        s_mul_i32 {T}, s2, {84*128}
        s_add_u32 {T}, {T}, {FHOFF}
        v_lshl_add_u32 {fo}, v0, 7, {T}
        s_lshl_b32 {T}, {T3}, 7
        s_add_u32 {T}, {T}, {FHOFF + 2688*128}
        v_mov_b32 {fg}, {T}
        v_cmp_eq_u32 vcc, 84, v0
        v_cndmask_b32 {fo}, {fo}, {fg}, vcc
        v_mov_b32 {t}, 0x7fffff00
        v_cmp_gt_u32 vcc, 85, v0
        v_cndmask_b32 {fo}, {t}, {fo}, vcc
        s_mul_i32 {T}, s2, 196
        v_add_u32 {to}, {T}, {to}
        v_lshlrev_b32 {to}, 8, {to}
        v_bfe_u32 {t}, {l}, 2, 2              ; i>>2
        v_lshrrev_b32 {t2}, 4, {l}            ; rho
        v_lshl_add_u32 {a}, {t}, 2, {t2}
        v_lshlrev_b32 {a}, 7, {a}             ; row*128
        v_lshrrev_b32 {bw}, 5, {l}
        v_lshl_add_u32 {t}, {t}, 1, {bw}      ; swz
        v_bfe_u32 {bw}, {l}, 1, 1
        s_lshl_b32 {T}, {W}, 1
        v_add_u32 {bw}, {T}, {bw}
        v_xor_b32 {t}, {t}, {bw}
        v_lshl_add_u32 {a}, {t}, 4, {a}
        v_and_b32 {t}, 1, {l}
        v_lshl_add_u32 {a}, {t}, 3, {a}
        s_mul_i32 {T}, {W}, {7*16*144}
        s_add_u32 {T}, {T}, {B0}
        v_and_b32 {t}, 15, {l}
        v_mul_u32_u24 {t}, 144, {t}
        v_lshl_add_u32 {t}, {t2}, 4, {t}
        v_add_u32 {bw}, {T}, {t}
        v_mul_u32_u24 {t}, 144, {r8}
        v_lshl_add_u32 {t}, {c8}, 4, {t}
        v_add_u32 {br}, {T}, {t}
        v_lshlrev_b32 {uo}, 12, {r8}
        v_lshl_add_u32 {uo}, {c8}, 4, {uo}
        s_lshl_b32 {T}, {W}, 16
        s_lshl_b32 {T2}, {T3}, 7
        s_add_u32 {T2}, {T2}, {T}
        s_add_u32 {T2}, {T2}, {UOFF}
        buffer_store_dword {zero}, {fo}, s[52:55], 0 offen sc1''')
        stamp()
        s('''@waitvm hx
        s_barrier''')
        stamp()
        if touch:
            s(f'''global_load_dword {d[2]}, {to}, s[28:29]
            global_load_dword {d[3]}, {to}, s[28:29] offset:128''')
        for n in range(7):
            for A in range(2):
                for tt in range(2):
                    s(f'ds_read_b64_tr_b16 {ub.sub(8*n + 4*A + 2*tt, 2)}, {a} offset:{n*8192 + A*4096 + tt*2048}')
        for n in range(7):
            for A in range(2): s(f'ds_write_b128 {bw}, {ub.sub(8*n + 4*A, 4)} offset:{n*16*144 + 64*A}')
        for n in range(7):
            for h in range(2): s(f'ds_read_b128 {ub.sub(8*n + 4*h, 4)}, {br} offset:{n*16*144 + h*8*144}')
        stamp()
        for n in range(7):
            for h in range(2):
                s(f's_add_u32 {T}, {T2}, {n * 64 * 4096 + h * 8 * 4096}')
                s(f'buffer_store_dwordx4 {ub.sub(8*n + 4*h, 4)}, {uo}, s[52:55], {T} offen sc1', tag='ust')
        stamp()
        gs = V.alloc(56, 2); go = V.alloc(); xs = V.alloc(56, 2); xa = V.alloc(2); one = V.alloc()
        s(f'''v_and_b32 {go}, 3, v0
        v_lshlrev_b32 {t2}, 1, {go}
        v_lshlrev_b32 {go}, 5, {go}
        v_lshrrev_b32 {t}, 2, v0
        v_bfe_u32 {xa[0]}, v0, 3, 3
        v_xor_b32 {t2}, {t2}, {xa[0]}
        v_lshlrev_b32 {t}, 7, {t}
        v_lshl_add_u32 {xa[0]}, {t2}, 4, {t}
        v_xor_b32 {xa[1]}, 16, {xa[0]}
        v_mov_b32 {one}, 1
        s_lshl_b32 {T}, {T3}, 2
        v_mov_b32 {fo}, {T}''')
        for j in range(14): s(f'ds_read_b128 {xs.sub(4*j, 4)}, {xa[j%2]} offset:{8192*(j//2)}')
        s('@waitvm ust\ns_barrier')
        s.atom(f'''s_cmp_eq_u32 {W}, 0
        s_cbranch_scc0 L_h1
        s_mov_b64 exec, 1
        global_store_dword {fo}, {one}, s[34:35] sc1
        s_mov_b64 exec, -1
        L_h1:''')
        stamp()
        for j in range(14): s(f'global_load_dwordx4 {gs.sub(4*j, 4)}, {go}, s[30:31] offset:{128*(j//2) + 16*(j%2)}')
        s('s_waitcnt vmcnt(0)')
        stamp()
        acc = V.alloc(2); p = V.alloc(8)
        s(f'v_mov_b32 {acc[0]}, 0\nv_mov_b32 {acc[1]}, 0')
        for j in range(0, 56, 2):
            Q = [p.sub(0, 4), p.sub(4, 4)]
            for h in range(2):
                x, g = xs[j + h], gs[j + h]; q = Q[h]
                s(f'''v_lshlrev_b32 {q[0]}, 16, {x}
                v_and_b32 {q[1]}, 0xffff0000, {x}
                v_lshlrev_b32 {q[2]}, 16, {g}
                v_and_b32 {q[3]}, 0xffff0000, {g}''')
            for q in Q: s(f'v_pk_mul_f32 {q.sub(0, 2)}, {q.sub(0, 2)}, {q.sub(2, 2)}')
            for q in Q: s(f'v_cvt_pk_bf16_f32 {q[2]}, {q[0]}, {q[1]}')
            for q in Q: s(f'v_lshlrev_b32 {q[0]}, 16, {q[2]}\nv_and_b32 {q[1]}, 0xffff0000, {q[2]}')
            for q in Q: s(f'v_pk_add_f32 {acc}, {acc}, {q.sub(0, 2)}')
        s(f'''v_add_f32 {acc[0]}, {acc[0]}, {acc[1]}
        v_add_f32_dpp {acc[0]}, {acc[0]}, {acc[0]} quad_perm:[1,0,3,2] row_mask:0xf bank_mask:0xf
        v_add_f32_dpp {acc[0]}, {acc[0]}, {acc[0]} quad_perm:[2,3,0,1] row_mask:0xf bank_mask:0xf
        v_cvt_pk_bf16_f32 {t}, {acc[0]}, {acc[0]}
        v_lshlrev_b32 {t}, 16, {t}
        v_mul_f32 {t}, {f2h(-LOG2E)}, {t}
        v_exp_f32 {t}, {t}
        v_add_f32 {t}, 1.0, {t}
        v_rcp_f32 {t}, {t}
        v_cvt_pk_bf16_f32 {t}, {t}, {t}
        v_lshlrev_b32 {acc[0]}, 16, {t}
        v_sub_f32 {t}, 1.0, {acc[0]}
        v_cvt_pk_bf16_f32 {t}, {t}, {t}
        v_lshlrev_b32 {acc[1]}, 16, {t}
        v_lshrrev_b32 {t}, 2, v0
        v_lshlrev_b32 {t}, 3, {t}
        s_lshl_b32 {T}, {T3}, 9
        s_add_u32 {T}, {T}, {GOFF}
        s_mov_b32 exec_lo, 0x11111111
        s_mov_b32 exec_hi, 0x11111111
        buffer_store_dwordx2 {acc}, {t}, s[52:55], {T} offen sc1
        s_mov_b64 exec, -1
        s_waitcnt vmcnt(0)
        s_barrier''')
        s.atom(f'''s_cmp_eq_u32 {W}, 0
        s_cbranch_scc0 L_h2
        s_mov_b64 exec, 1
        buffer_store_dword {one}, {fg}, s[52:55], 0 offen sc1
        s_mov_b64 exec, -1
        L_h2:''')
        stamp(); self.stamp(s, 'e', real=True); self.stamp_out(s)
        s('s_endpgm')
        return s

    def helper_touch(self, s, V):
        t = V.alloc(); d = V.alloc(4)
        s(f'''s_mul_i32 s3, s2, 196
        v_min_u32 {t}, 195, v0
        v_add_u32 {t}, s3, {t}
        v_lshlrev_b32 {t}, 8, {t}
        global_load_dword {d[0]}, {t}, s[24:25] offset:128
        global_load_dword {d[1]}, {t}, s[26:27] offset:128
        global_load_dword {d[2]}, {t}, s[28:29]
        global_load_dword {d[3]}, {t}, s[28:29] offset:128''')

    def build(self):
        V = self.V; A = self.A; S = self.S; o = self.opt; I = self.iopt
        m = Stream()
        m.add(self.entry())
        head, tail = self.prologue(); m.add(head)
        tail.add(self.addrs()); tail.add(self.misc_addrs())
        d = Stream()
        for it in (1, 0, 3): d.add(self.dma(it, True))
        m.add(sprinkle(tail, d, 0, I('ev0', 12)))
        self.Xr = A.alloc(224, 4); AW = A.alloc(32, 4); self.Wf = [AW.sub(0, 8), AW.sub(8, 8)]
        m.add(self.kgen())
        V.free(self.pfreg)
        self.stamp(m, 'kgen')
        self.acc = [[V.alloc(16, 4) for _ in range(4)], None]
        k1, k2, k3, k4 = self.kexch()
        self.kx_free()
        self.acc[1] = [V.alloc(16, 4) for _ in range(4)]
        sc = Sched(I('budget', 6)); G = self.G
        self.gemm1(sc)
        def free_at(it):
            if it < 8: return 0
            p = it - 8
            if p < 14: return G(0, 4 * (p // 2) + 3, 1)
            return G(1, 4 * (p - 14) + 3, 1)
        def need_at(it):
            if it < 14: return G(0, 4 * (it // 2) - 1, 0)
            if it < 21: return G(1, 4 * (it - 14) - 1, 0)
            return 10**6
        g = 0
        for it in [x for x in range(2, 28) if x not in self.kitems and x != 3]:
            g = max(g, free_at(it))
            st = float(o.get('s0', 2)) if it < 14 else float(o.get('s1', 2.5))
            g = sc.place(self.dma(it, True), g, sc.n(), step=st)
            assert g <= need_at(it) - 4, (it, g, need_at(it))
        sc.place(k1, G(0, 0, 2), G(0, 3, 0)); sc.place(k2, G(0, 4), G(0, 5)); sc.place(k3, G(0, 6), G(0, 7)); sc.at(G(0, 8, 2), k4)
        tu = I('tu', 30)
        sc.at(G(0, tu, 2), self.dbg_load(0))
        sc.place(self.u_fetch(), G(0, tu + 5), G(0, tu + 6))
        sc.at(G(0, 27, 3), self.st('p0'))
        e0 = Stream()
        for kind, x in self.epi(0, 'woven'): e0.add(x)
        ge = sc.place(e0, G(1, 0, 2), G(1, I('e0end', 20)), dense=bool(I('e0dense', 1)))
        ge = sc.place(self.hstore(0), ge + 1, ge + 9, step=2)
        sc.at(ge, self.st('e0'))
        sc.place(self.u_put(), ge + 1, G(1, 27, 0), dense=True)
        V.free(self.et, self.eo)
        self.D = self.Xr.sub(0, 112); self.Hf = self.Xr.sub(112, 112); self.sHO = S.alloc()
        npre = I('npre', 3)
        dr = Stream()
        for n in range(npre): dr.add(self.d_reads(0, n, self.D.sub(16*n, 16)))
        sc.place(dr, ge + 4, G(1, 27, 0))
        sc.at(G(1, 27, 3), self.st('p1'))
        V.free(*self.acc[0]); V.free(self.vx, self.vw, *self.ax); V.free(self.aw)
        self.Z = [V.alloc(16, 4) for _ in range(4)]
        self.cF = [V.alloc(32, 4), AW]
        c0 = sc.n()
        fr0 = self.conv(sc)
        sc.place(fr0, G(1, 27, 0), G(1, 27, 4))
        c1 = sc.n()
        g = c0 - 1
        for kind, x in self.epi(1, o.get('epi', 'pkA')):
            if kind == 'pk':
                one = Stream(); one.append([i for a in x for i in a]); sc.at(g, one); g += 1
            else: g = sc.place(x, g, c1, dense=True)
        gf0 = c0 + I('f0', 4)
        sc.at(gf0, self.hflag(0))
        sc.at(g, self.hpoll_load(0))
        gs = sc.place(self.hstore(1), g, g + 4, step=1)
        sc.at(gs, self.st('epi1'))
        V.free(self.et, self.eo); V.free(*self.acc[1])
        d = Stream()
        for n in range(npre + 1): d.add(self.dma(28 + n, True))
        gd1 = sc.place(d, c0 + 1, c1, step=float(o.get('s2', 2.5)))
        gh = gs + I('hc0', 12)
        sc.at(gh, self.h_check(0))
        self.acc2 = [V.alloc(16, 4) for _ in range(4)]
        a0 = sc.n()
        for n in range(7):
            for fr in range(2):
                for sl in range(4): self.g2(sc, 0, n, fr, sl)
        b0 = sc.n()
        nl = I('nlast', 3)
        for n in range(7 - nl):
            for fr in range(2):
                for sl in range(4): self.g2(sc, 1, n, fr, sl)
        done = {}
        for sl in (1, 2, 3, 0):
            for n in range(7 - nl, 7):
                for fr in range(2): done[sl] = self.g2(sc, 1, n, fr, sl)
        e1 = sc.n()
        gl = gh + 1
        for n in range(7):
            gl = sc.place(self.h_loads(0, n), gl, b0, step=float(o.get('hstep', 2)))
            assert gl <= a0 + 8*n, (n, gl, a0)
        sc.at(gs + I('f1', 36), self.hflag(1))
        dr = Stream()
        for n in range(npre, 7): dr.add(self.d_reads(0, n, self.D.sub(16*n, 16)))
        gd = sc.place(dr, gs + 1, a0, dense=True)
        d = Stream(); d('@waitlg dr27')
        for n in range(npre + 1, 7): d.add(self.dma(28 + n, True))
        sc.place(d, max(gl, gd) + 1, b0, step=2)
        sc.at(a0 - 1, self.st('conv'))
        V.free(self.cF[0])
        cp1, cp2 = self.convpost()
        g = sc.place(cp1, a0 + 2, b0, dense=True)
        sc.gaps[g + 1]('@waitlg carry\ns_barrier')
        sc.at(g + 1, self.hpoll_load(1))
        g = sc.place(cp2, g + 1, b0, dense=True)
        sc.at(g, self.st('ast'))
        gh = g + I('hc1', 6)
        sc.at(gh, self.h_check(1))
        sc.at(gh, self.dbg_load(1))
        g2 = gh + 1
        for n in range(7):
            g2 = max(g2, a0 + 8*n + 8)
            g2 = sc.place(self.h_loads(1, n), g2, e1, step=float(o.get('hstep', 2)))
            assert g2 < b0 + 8*min(n, 7 - nl), (n, g2, b0)
        for n in range(7):
            lo = max(a0 + 8*n + 8, b0 + 8*min(n, 7 - nl) - 16)
            sc.place(self.d_reads(1, n, self.D.sub(16*n, 16)), lo, lo + 8)
        sc.at(b0 - 1, self.st('g2a'))
        ga = g + I('fa', 36)
        sc.at(ga, self.aflag())
        sc.place(self.g_fetch(), ga, ga + 3)
        gp = min(e1 - 2, ga + I('ap', 24))
        sc.at(gp, self.a_poll_load())
        self.ga = V.alloc(16, 2)
        pre, wr, fin1, fin2 = self.final()
        af = self.a_fetch(); ap = self.a_prep()
        sc.place(pre, ga + 3, done[1])
        for k in (1, 2, 3): sc.place(wr[k], done[k] + 2, done[k] + 6)
        sc.at(min(e1 - 1, gp + I('ac', 12)), af)
        for g in range(7, sc.n(), 16): sc.at(g, self.st(f'g{g + 1}'))
        m.add(sc.out())
        self.stamp(m, 'g2b')
        m.add(fin1); m.add(ap); m.add(fin2)
        self.stamp(m, 'end'); self.stamp(m, 'e', real=True)
        self.stamp_out(m)
        m('s_endpgm')
        m.add(self.cold)
        m.add(self.helper())
        m('L_end:\ns_endpgm')
        if o.get('occ'): print(' '.join(str(sc.occ(g)) for g in range(sc.n())))
        k = K(KN + '_kernel', vgpr=256, agpr=256)
        k.lines = finalize2(m, not o.get('noalign'), 'v255' if o.get('trace') else None)
        txt = build([k], [(KN + '_kernel', 256, 256, 163840)])
        if o.get('trace'): txt = '; trace: ' + ' '.join(finalize2.names) + '\n' + txt
        return txt

if __name__ == '__main__':
    opt = dict(a.split('=') if '=' in a else (a, 1) for a in sys.argv[2:])
    open(sys.argv[1], 'w').write(Gen2(opt).build())
```

```python
import sys
from gen2 import *
FH3 = FHOFF
FA3 = FHOFF + 896 * 128
FH13 = FHOFF + 1792 * 128
FG3 = FHOFF + 2688 * 128

class Gen3(Gen2):
    def misc_addrs(self):
        s = Stream(); V = self.V; S = self.S; l = self.lane; sT = self.sT; sT2 = self.sT2
        self.fl = V.alloc(); self.fa = V.alloc(); self.fs = V.alloc(); self.fp = V.alloc(); self.fh = V.alloc()
        self.c1 = V.alloc(2); self.c0 = V.alloc(2); self.sH = S.alloc(); self.sH1 = S.alloc()
        self.hv = V.alloc(2); self.av = V.alloc(); self.row = V.alloc(); t = V.alloc(); t2 = V.alloc()
        c0 = -2 * 0.7978845608028654 * LOG2E
        s(f'''
        s_lshl1_add_u32 {sT}, {self.sRB}, {self.sRG}
        s_mul_i32 {sT2}, {sT}, 14
        s_add_u32 {sT2}, {sT2}, {self.sCB}
        s_lshl1_add_u32 {sT2}, {sT2}, {self.sCG}      ; R64p*28 + uidx
        s_mul_i32 {sT}, {sT}, 28
        s_add_u32 {self.sH}, {sT}, {sT2}
        s_lshl_b32 {self.sH}, {self.sH}, 12
        s_add_u32 {self.sH1}, {self.sH}, {28*4096}
        s_lshl_b32 {sT2}, {sT2}, 7
        s_add_u32 {sT2}, {sT2}, {FH3}
        v_mov_b32 {self.fs}, {sT2}
        s_lshl2_add_u32 {sT}, {self.sM}, {self.sW}
        s_lshl_b32 {sT}, {sT}, 7
        s_add_u32 {sT}, {sT}, {FA3}
        v_mov_b32 {t}, {sT}
        v_cmp_lt_u32 vcc, 7, {l}
        v_cndmask_b32 {self.fs}, {self.fs}, {t}, vcc
        v_and_b32 {t}, 7, {l}
        v_lshl_add_u32 {self.fs}, {t}, 4, {self.fs}
        s_lshl1_add_u32 {sT}, {self.sM}, {self.sRG}
        s_lshl_b32 {sT}, {sT}, 12
        s_add_u32 {sT}, {sT}, {AOFF}
        s_lshl_b32 {sT2}, {self.sCG}, 9
        s_add_u32 {sT}, {sT}, {sT2}
        v_bfe_u32 {t}, {l}, 2, 2
        v_lshl_add_u32 {self.av}, {t}, 10, {sT}
        v_bfe_u32 {t}, {l}, 4, 1
        v_lshl_add_u32 {self.av}, {t}, 8, {self.av}
        v_lshrrev_b32 {t}, 5, {l}
        v_lshl_add_u32 {self.av}, {t}, 7, {self.av}
        v_and_b32 {t}, 3, {l}
        v_lshl_add_u32 {self.av}, {t}, 4, {self.av}
        v_and_b32 {t}, 31, {l}
        v_lshlrev_b32 {self.fa}, 2, {t}
        s_lshl1_add_u32 {sT}, {self.sR64}, {self.sRG}
        s_lshl_b32 {sT}, {sT}, 5
        v_add_u32 {self.row}, {sT}, {t}
        s_lshl1_add_u32 {sT2}, {self.sCOL}, {self.sCG}
        s_lshl_b32 {sT2}, {sT2}, 6
        s_bfe_u32 {sT}, {self.sR64}, 0x10002
        s_add_u32 {sT2}, {sT2}, {sT}
        s_lshl_b32 {sT2}, {sT2}, 7
        s_add_u32 {sT2}, {sT2}, {FA3}
        v_lshl_add_u32 {self.fp}, {t}, 8, {sT2}
        s_mul_i32 {sT}, {self.sR64}, 28
        s_mul_i32 {sT2}, {self.sW}, 7
        s_add_u32 {sT2}, {sT}, {sT2}
        s_add_u32 {sT}, {sT}, {sT2}                    ; R64*56 + 7w
        s_lshl_b32 {sT2}, {sT2}, 7
        s_add_u32 {sT2}, {sT2}, {FH3}
        v_min_u32 {t}, 6, {t}
        v_lshl_add_u32 {t}, {t}, 7, {sT2}
        v_add_u32 {self.fh}, {FH13 - FH3}, {t}
        v_cmp_lt_u32 vcc, 31, {l}
        v_cndmask_b32 {self.fp}, {self.fp}, {t}, vcc
        s_lshl_b32 {sT2}, {self.sR64}, 7
        s_add_u32 {sT2}, {sT2}, {FG3}
        v_mov_b32 {t2}, {sT2}
        v_cndmask_b32 {self.fh}, {self.fh}, {t2}, vcc
        s_lshl_b32 {sT}, {sT}, 12
        s_lshl_b32 {sT2}, {self.sRG}, 11
        s_add_u32 {sT2}, {sT2}, {sT}
        v_add_u32 {self.hv[0]}, {sT2}, {self.l16}
        v_xor_b32 {self.hv[1]}, 0x800, {self.hv[0]}
        v_mov_b32 {self.c1[0]}, {f2h(c0 * 0.044715)}
        v_mov_b32 {self.c1[1]}, {f2h(c0 * 0.044715)}
        v_mov_b32 {self.c0[0]}, {f2h(c0)}
        v_mov_b32 {self.c0[1]}, {f2h(c0)}''')
        V.free(t, t2)
        self.ff = V.alloc(4, 2)
        for i in range(4): s(f'v_mov_b32 {self.ff[i]}, -1')
        return s
    def clears(self):
        s = Stream()
        for p in range(2):
            if self.opt.get('noclr'): break
            for q in range(4):
                s(f'buffer_store_dwordx4 {self.ff}, {self.l16}, s[52:55], {self.sH1 if p else self.sH} offen offset:{q * 1024} sc1', tag='clr')
        for q in range(2): s(f'buffer_store_dwordx4 {self.ff}, {self.av}, s[52:55], 0 offen offset:{64 * q} sc1', tag='clr')
        return s
    def setflags(self):
        s = Stream()
        s('@waitvm clr')
        s.atom(f'''s_mov_b64 exec, 3
        buffer_store_dword {self.one}, {self.fs}, s[52:55], 0 offen sc1
        s_mov_b64 exec, -1''')
        return s
    def hst(self, p, q):
        return f'buffer_store_dwordx4 {self.eo.sub(4*q, 4)}, {self.l16}, s[52:55], {self.sH1 if p else self.sH} offen offset:{q * 1024} sc1'
    def h_ld(self, p, n, k, so):
        fr, rt = divmod(k, 2)
        return f'buffer_load_dwordx4 {self.Hf.sub(16*n + 8*fr + 4*rt, 4)}, {self.hv[rt]}, s[52:55], {so} offen offset:{fr * 1024} sc1'
    def h_so(self, p, n, so):
        return f's_lshl_b32 {so}, {self.sXO[n]}, 5' + (f'\ns_add_u32 {so}, {so}, {28*4096}' if p else '')
    def sent_check(self, regs, reload_txt):
        s = Stream(); m = self.fl
        def chain():
            o = [f'v_max3_u32 {m}, {regs[0]}, {regs[1]}, {regs[2]}']
            for i in range(3, regs.n, 2): o.append(f'v_max3_u32 {m}, {m}, {regs[i]}, {regs[min(i + 1, regs.n - 1)]}')
            return '\n'.join(o) + f'\nv_cmp_eq_u32 vcc, -1, {m}'
        slow = self.lab('slow'); ok = self.lab('ok'); lp = self.lab('lp')
        s(chain())
        s.atom(f's_cbranch_vccnz {slow}\n{ok}:')
        self.cold(f'''@forget
        {slow}:
        s_mov_b32 {self.sCnt}, 0
        {lp}:
        s_add_u32 {self.sCnt}, {self.sCnt}, 1
        s_cmp_gt_u32 {self.sCnt}, {SPIN}
        s_cbranch_scc1 {ok}
        {self.spin_odo(self.sCnt)}
        {reload_txt}
        s_waitcnt vmcnt(0)
        {chain()}
        s_cbranch_vccnz {lp}
        s_branch {ok}''')
        return s
    def convpost(self):
        s = Stream(); V = self.V; Z = self.Z
        ex = V.alloc(4, 2); ex2 = V.alloc()
        M = 'row_mask:0xf bank_mask:'
        def level(Ta, Tb, na, sh, d, m0, m1, extra):
            T = Ta + extra
            for r in range(na + d - 1, d - 1, -1):
                if r < na: s(f'v_add_f32_dpp {T[r]}, {Ta[r - d]}, {T[r]} row_shl:{sh} {M}{m0}')
                else: s(f'v_mov_b32_dpp {T[r]}, {Ta[r - d]} row_shl:{sh} {M}{m0}')
            for r in range(na + d - 1, -1, -1):
                if r < d: s(f'v_mov_b32_dpp {T[r]}, {Tb[r]} row_shr:{sh} {M}{m1}')
                elif r < na: s(f'v_add_f32_dpp {T[r]}, {Tb[r]}, {Tb[r - d]} row_shr:{sh} {M}{m1}')
                else: s(f'v_mov_b32_dpp {T[r]}, {Tb[r - d]} quad_perm:[0,1,2,3] {M}{m1}')
                if d == 2 and r == 16: s(f'ds_write_b128 {ac}, {ex} offset:16', tag='carry')
            return T
        ac = V.alloc()
        s.atom(f'''s_mul_i32 {self.sT2}, {self.sRG}, 2064
        s_add_u32 {self.sT2}, {self.sT2}, {L_C}
        v_lshl_add_u32 {ac}, {self.vg}, 4, {self.sT2}''')
        L = lambda z: [z[r] for r in range(16)]
        T01 = level(L(Z[0]), L(Z[1]), 16, 4, 1, '0x5', '0xa', [ex[0]])
        T23 = level(L(Z[2]), L(Z[3]), 16, 4, 1, '0x5', '0xa', [ex2])
        Y = level(T01, T23, 17, 8, 2, '0x3', '0xc', [ex[1], ex[2]])
        s2 = Stream(); o = Z[1]
        s2(f'ds_read_b128 {ex}, {ac}')
        for q in range(2, 8): s2(f'v_cvt_pk_bf16_f32 {o[q]}, {Y[2*q]}, {Y[2*q + 1]}')
        s3 = Stream()
        for r in range(3): s3(f'v_add_f32 {Y[r]}, {Y[r]}, {ex[r]}')
        for q in range(2): s3(f'v_cvt_pk_bf16_f32 {o[q]}, {Y[2*q]}, {Y[2*q + 1]}')
        s4 = Stream()
        s4(f'''buffer_store_dwordx4 {o.sub(4, 4)}, {self.av}, s[52:55], 0 offen offset:64 sc1
        buffer_store_dwordx4 {o.sub(0, 4)}, {self.av}, s[52:55], 0 offen sc1''')
        self.cp_free = lambda: V.free(ex, ex2, ac, *Z)
        return s, s2, s3, s4
    def g_load(self):
        s = Stream(); V = self.V
        self.gg = V.alloc(2)
        s.atom(f'''v_lshlrev_b32 {self.fa}, 3, {self.row}
        s_mov_b32 {self.sT2}, {GOFF}
        buffer_load_dwordx2 {self.gg}, {self.fa}, s[52:55], {self.sT2} offen sc1''')
        return s
    def a_addr(self):
        s = Stream(); V = self.V; l = self.lane; t = V.alloc()
        self.aa = V.alloc(2); self.abw = V.alloc(); self.abr = V.alloc()
        s.atom(f'''s_lshl1_add_u32 {self.sT2}, {self.sCOL}, {self.sCG}
        s_lshl_b32 {self.sT2}, {self.sT2}, 17
        s_lshr_b32 {self.sT}, {self.sR64}, 1
        s_lshl_b32 {self.sT}, {self.sT}, 8
        s_add_u32 {self.sT2}, {self.sT2}, {self.sT}
        s_and_b32 {self.sT}, {self.sR64}, 1
        s_lshl1_add_u32 {self.sT}, {self.sT}, {self.sRG}
        s_lshl4_add_u32 {self.sT2}, {self.sT}, {self.sT2}
        s_add_u32 {self.sT2}, {self.sT2}, {AOFF}
        v_lshrrev_b32 {t}, 2, {l}
        v_lshl_add_u32 {self.aa[0]}, {t}, 12, {self.sT2}''')
        s(f'''v_and_b32 {t}, 3, {l}
        v_lshl_add_u32 {self.aa[0]}, {t}, 6, {self.aa[0]}
        v_add_u32 {self.aa[1]}, 0x10000, {self.aa[0]}''')
        s.atom(f'''s_lshl_b32 {self.sT2}, {self.sW}, 11
        s_add_u32 {self.sT2}, {self.sT2}, {L_AB}
        v_add_u32 {self.abw}, {self.sT2}, {self.l16}
        v_lshl_add_u32 {self.abr}, {t}, 3, {self.sT2}''')
        s(f'''v_lshrrev_b32 {t}, 5, {l}
        v_lshl_add_u32 {self.abr}, {t}, 10, {self.abr}
        v_bfe_u32 {t}, {l}, 2, 2
        v_lshl_add_u32 {self.abr}, {t}, 6, {self.abr}
        v_bfe_u32 {t}, {l}, 4, 1
        v_lshl_add_u32 {self.abr}, {t}, 5, {self.abr}''')
        self.aa_t = t
        return s
    def a_ld(self):
        return '\n'.join(f'buffer_load_dwordx4 {self.ab.sub(4*q, 4)}, {self.aa[q]}, s[52:55], 0 offen sc1' for q in range(2))
    def a_prep(self):
        s = Stream()
        s.add(self.sent_check(self.ab, self.a_ld()))
        s(f'''ds_write_b128 {self.abw}, {self.ab.sub(0, 4)}
        ds_write_b128 {self.abw}, {self.ab.sub(4, 4)} offset:1024''')
        for j in range(4): s(f'ds_read_b64_tr_b16 {self.ab.sub(2*j, 2)}, {self.abr} offset:{j * 256}')
        s2 = Stream()
        for q in range(8):
            s2(f'''v_lshlrev_b32 {self.ga[2*q]}, 16, {self.ab[q]}
            v_and_b32 {self.ga[2*q + 1]}, 0xffff0000, {self.ab[q]}''')
        return s, s2
    def final(self):
        V = self.V; l = self.lane
        a = V.alloc(); ar = V.alloc(3, 1); t = V.alloc(); aw3 = V.alloc(3, 1)
        base = [slot(28 + k - 1) for k in range(4)]
        pre = Stream()
        pre(f'v_add_u32 {a}, {self.sLW}, {self.l16}')
        for k in (1, 2, 3):
            pre(f'''v_xor_b32 {ar[k-1]}, {k * 4096}, {a}
            v_add_u32 {ar[k-1]}, {base[k]}, {ar[k-1]}
            v_add_u32 {aw3[k-1]}, {base[k]}, {a}''')
        pre.atom(f'''s_lshl1_add_u32 {self.sT2}, {self.sCOL}, {self.sCG}
        s_lshl_b32 {self.sT2}, {self.sT2}, 6
        v_mul_u32_u24 {a}, 896, {self.row}
        v_add_u32 {a}, {self.sT2}, {a}''')
        pre(f'''v_lshrrev_b32 {t}, 5, {l}
        v_lshl_add_u32 {a}, {t}, 5, {a}''')
        wr = {}
        for k in (1, 2, 3):
            wr[k] = Stream()
            for q in range(4): wr[k](f'ds_write_b128 {aw3[k-1]}, {self.acc2[k].sub(4*q, 4)} offset:{q * 1024}')
        P = [None] + [self.Hf.sub(16 * (k - 1), 16) for k in (1, 2, 3)]; o = self.Hf.sub(48, 8)
        s = Stream()
        s('@waitlg\ns_barrier')
        for q in range(4):
            for k in (1, 2, 3): s(f'ds_read_b128 {P[k].sub(4*q, 4)}, {ar[k-1]} offset:{q * 1024}')
        s2 = Stream(); b = self.acc2[0]
        for r in range(0, 16, 2): s2(f'v_pk_mul_f32 {self.ga.sub(r, 2)}, {self.ga.sub(r, 2)}, {self.gg} op_sel_hi:[1,0]')
        for q in range(4):
            for k in (1, 2, 3):
                for r in (4*q, 4*q + 2): s2(f'v_pk_add_f32 {b.sub(r, 2)}, {b.sub(r, 2)}, {P[k].sub(r, 2)}')
            for r in (4*q, 4*q + 2): s2(f'v_pk_fma_f32 {b.sub(r, 2)}, {b.sub(r, 2)}, {self.gg}, {self.ga.sub(r, 2)} op_sel:[0,1,0] op_sel_hi:[1,1,1]')
            for r in (4*q, 4*q + 2): s2(f'v_cvt_pk_bf16_f32 {o[r // 2]}, {b[r]}, {b[r + 1]}')
            if q % 2 == 1:
                s2(f'buffer_store_dwordx4 {o.sub(4*(q // 2), 4)}, {a}, s[56:59], 0 offen offset:{16 * (q // 2)} {self.opt.get("ost", "")}')
        return pre, wr, s, s2

    def build(self):
        V = self.V; A = self.A; S = self.S; o = self.opt; I = self.iopt; F = lambda n, d: float(o.get(n, d))
        m = Stream()
        m.add(self.entry())
        head, tail = self.prologue(); m.add(head)
        tail.add(self.addrs()); tail.add(self.misc_addrs())
        d = Stream()
        nd0 = I('nd0', 3); self.korder = [1, 0, 3, 2, 4, 5, 6]
        for it in self.korder[:nd0]: d.add(self.dma(it, True))
        self.korder_rest = self.korder[nd0:]
        m.add(sprinkle(tail, d, I('ev00', 0), I('ev0', 12)))
        self.sCnt = S.alloc(); self.sHO = S.alloc()
        self.Xr = A.alloc(224, 4); AW = A.alloc(32, 4); self.Wf = [AW.sub(0, 8), AW.sub(8, 8)]
        kg = self.kgen()
        clr = self.clears(); cw = o.get('clr', 'k')
        if cw == 'k': kg = sprinkle(kg, clr, I('c0', 30), I('cev', 24))
        elif cw == 'pre': m.add(clr)
        m.add(kg)
        V.free(self.pfreg)
        self.stamp(m, 'kgen')
        big = V.alloc(112, 4); blk = V.alloc(64, 4)
        self.acc = [[blk.sub(16*i, 16) for i in range(4)], [big.sub(16*i, 16) for i in range(4)]]
        sub = Regs('v', 256, 256)
        for i in range(big.b, big.b + 112): sub.free_[i] = True
        self.V = sub; k1, k2, k3, k4 = self.kexch(); self.V = V
        V.free(self.kacc)
        sc = Sched(I('budget', 6)); G = self.G
        self.gemm1(sc)
        if cw == 'p0': sc.place(clr, I('c0', 30), sc.n(), step=F('cev', 4))
        self.Z = self.acc[0]; self.D = self.Xr.sub(0, 112); self.Hf = big
        self.cF = [self.Xr.sub(160, 32), AW]
        c0 = sc.n(); fr0 = self.conv(sc); a0 = sc.n()
        self.acc2 = [None] + [self.Xr.sub(112 + 16*i, 16) for i in range(3)]
        acc20 = self.acc2[0] = V.alloc(16, 4)
        for n in range(7):
            for fr in range(2):
                for sl in range(4): self.g2(sc, 0, n, fr, sl)
        b0 = sc.n(); nl = I('nlast', 2)
        for n in range(7 - nl):
            for fr in range(2):
                for sl in range(4): self.g2(sc, 1, n, fr, sl)
        done = {}
        for sl in (1, 2, 3, 0):
            for n in range(7 - nl, 7):
                for fr in range(2): done[sl] = self.g2(sc, 1, n, fr, sl)
        e1 = sc.n()
        use = lambda p, n: (a0 + 8*n) if p == 0 else (b0 + 8*min(n, 7 - nl))
        npre = I('npre', 4); dr0 = I('dr0', G(1, 21)); drs = I('drs', 6)
        drd = {}
        for n in range(7): drd[n] = (dr0 + drs * (n + 1)) if n < npre else (c0 + I('dr1', 6) + I('drs1', 6) * (n - npre + 1))
        def free_at(it):
            if it < 8: return 0
            p = it - 8
            if p < 14: return G(0, 4 * (p // 2) + 3, 1)
            if p < 21: return G(1, 4 * (p - 14) + 3, 1)
            return drd[p - 21] + 2
        def need_at(it):
            if it < 14: return G(0, 4 * (it // 2) - 1, 0)
            if it < 21: return G(1, 4 * (it - 14) - 1, 0)
            if it < 28: n = it - 21; return drd[n] - (drs if n < npre else I('drs1', 6))
            return 10**6
        g = 0; items = [x for x in range(35) if x not in self.kitems and x not in self.korder[:nd0]]
        items = [x for x in items if x < 21] + sorted([x for x in items if x >= 21], key=free_at)
        for it in items:
            g = max(g, free_at(it))
            st = F('s0', 2) if it < 14 else (F('s1', 2.5) if it < 27 else F('s2', 2))
            d = Stream()
            if it >= 29: d(f'@waitlg dr{it - 8}')
            d.add(self.dma(it, True))
            g = sc.place(d, g, sc.n(), step=st)
            assert g <= need_at(it) - 2, (it, g, need_at(it))
        gdma = g
        for n in range(7):
            assert drd[n] - drs >= G(1, 2*n + 2)
            sc.place(self.d_reads(0, n, self.D.sub(16*n, 16)), need_at(21 + n), drd[n])
        hg = {}; g = max(gdma, I('h0', 280))
        for p in range(2):
            if p: g = max(g, I('h1', 336))
            for n in range(7):
                if p: g = max(g, a0 + 8*n + 7)
                sc.gaps[int(g)].atom(self.h_so(p, n, self.sHO))
                for k in range(4):
                    sc.gaps[int(g)](self.h_ld(p, n, k, self.sHO)); hg[p, n, k] = int(g); g += F('hstep', 2)
        sc.place(k1, G(0, 0, 2), G(0, 3, 0)); sc.place(k2, G(0, 4), G(0, 5)); sc.place(k3, G(0, 6), G(0, 7)); sc.at(G(0, 8, 2), k4)
        tu = I('tu', 40)
        sc.at(G(0, tu, 2), self.dbg_load(0))
        self.V = sub2 = Regs('v', 256, 256)
        for i in range(big.b + 64, big.b + 112): sub2.free_[i] = True
        uf = self.u_fetch(); uf.add(self.setflags())
        sc.place(uf, G(0, tu + 5), G(0, tu + 6))
        sc.at(G(0, 27, 3), self.st('p0'))
        e0 = Stream(); parts = self.epi(0, 'woven')
        for n, (kind, x) in enumerate(parts):
            e0.add(x)
            if n % 2 == 1: e0(self.hst(0, n // 2))
        ge = sc.place(e0, G(1, 0, 2), G(1, I('e0end', 22)), dense=True)
        sc.at(ge, self.st('e0'))
        sc.place(self.u_put(), max(ge + 1, G(0, tu + 11)), G(1, 27, 0), dense=True)
        sub2.free(self.et, self.eo); self.V = V
        sc.at(G(1, 27, 3), self.st('p1'))
        V.free(self.vx, self.vw, self.ff, *self.ax); V.free(self.aw)
        sc.place(fr0, G(1, 27, 0), G(1, 27, 4))
        self.V = sub2; mode = o.get('epi', 'pk'); parts = self.epi(1, mode); self.V = V
        g = c0 - 1; per = len(parts) // 2
        for n, (kind, x) in enumerate(parts):
            if mode == 'woven':
                if n % 2 == 1: x(self.hst(1, n // 2))
            elif n % per == per - 1: x(self.hst(1, 2 * (n // per))); x(self.hst(1, 2 * (n // per) + 1))
            if kind == 'pk':
                one = Stream(); one.append([i for a in x for i in a]); sc.at(g, one)
                if n + 1 < len(parts) and parts[n + 1][0] != 'pk': g += 1
            else: g = sc.place(x, g, a0, dense=True, budget=I('eb', 6 if mode != 'pk' else 10))
        sc.at(g, self.st('epi1'))
        assert g < hg[0, 0, 0], (g, hg[0, 0, 0])
        pld = f'buffer_load_dword {self.fl}, {self.fp}, s[52:55], 0 offen sc1'
        gp = I('p2', c0 - 6)
        sc.gaps[gp](pld)
        pc = Stream(); self.poll_check(pc, pld, self.fl); pc.add(self.g_load())
        sc.at(hg[0, 0, 0] - 1, pc)
        sc.at(a0 - 1, self.st('conv'))
        lead = I('lead', 4)
        for p in range(2):
            for n in range(7):
                g1 = use(p, n) - 1 - (lead * (6 - n) if (p and n >= 7 - nl) else 0); g0 = g1 - lead
                assert hg[p, n, 3] < g0, (p, n, hg[p, n, 3], g0)
                txt = []
                for pp in range(p, 2):
                    for nn in range(n if pp == p else 0, 7):
                        ks = [k for k in range(4) if hg[pp, nn, k] <= g1]
                        if pp > p and not ks: continue
                        if pp == 0 and hg[1, nn, 0] <= g1: continue
                        if ks: txt.append(self.h_so(pp, nn, 's3')); txt += [self.h_ld(pp, nn, k, 's3') for k in ks]
                ck = self.sent_check(self.Hf.sub(16*n, 16), '\n'.join(txt))
                sc.place(ck[:-1], g0, g1); sc.at(g1, ck[-1:])
        cp1, cp2, cp3, cp4 = self.convpost()
        g = sc.place(cp1, a0 + 2, b0, dense=True, budget=I('cb', 6))
        sc.gaps[g]('@waitlg carry\ns_barrier')
        g = sc.place(cp2, g, b0, dense=True); g = sc.place(cp3, g + 1, b0, dense=True)
        g = sc.place(cp4, max(g, I('as', 0)), e1, step=1)
        sc.at(g, self.st('ast'))
        self.cp_free = None
        for n in range(7):
            lo = max(a0 + 8*n + 8, use(1, n) - 16)
            sc.place(self.d_reads(1, n, self.D.sub(16*n, 16)), lo, lo + 8)
        sc.at(b0 - 1, self.st('g2a'))
        self.V = sub3 = Regs('v', 256, 256)
        for i in range(blk.b, blk.b + 64): sub3.free_[i] = True
        self.ga = sub3.alloc(16, 2); self.ab = sub3.alloc(8, 2)
        pre, wr, fin1, fin2 = self.final(); pre.add(self.a_addr()); self.V = V
        gl = I('al', e1 - 14)
        sc.place(pre, g + 2, min(gl, done[1]))
        al = Stream(); al(self.a_ld()); sc.place(al, gl, e1, step=1)
        for k in (1, 2, 3): sc.place(wr[k], done[k] + 1, min(e1, done[k] + 1 + 2*nl))
        ap1, ap2 = self.a_prep()
        for g in range(7, sc.n(), 16): sc.at(g, self.st(f'g{g + 1}'))
        body = sc.out()
        drop = o.get('drop', '').split(',')
        if drop != ['']:
            nb = Stream()
            for a in body:
                i = a[0]
                if len(a) == 1:
                    if 'dma' in drop and (i.kind == 'dma' or (i.kind == 'pseudo' and i.op == 'waitvm' and i.arg[0].startswith('it') and i.arg[0] not in ('it0',))): continue
                    if 'bar' in drop and i.kind == 'barrier': continue
                    if 'ds' in drop and (i.kind == 'ds' or (i.kind == 'pseudo' and i.op == 'waitlg' and i.arg)): continue
                    if 'valu' in drop and i.kind in ('valu', 'trans') and not i.op.startswith(('v_add_u32', 'v_lshl', 'v_lshr', 'v_bfe', 'v_and', 'v_xor', 'v_mul_u32')): continue
                    if 'vm' in drop and i.kind == 'vmem' and i.tag != 'clr': continue
                if i.kind == 'branch' and 'vcc' in i.op: a = a[1:]
                nb.append(a)
            body = nb
        m.add(body)
        self.stamp(m, 'g2b')
        m.add(fin1); m.add(ap1); m.add(ap2); m.add(fin2)
        self.stamp(m, 'end'); self.stamp(m, 'e', real=True)
        self.stamp_out(m)
        m('s_endpgm')
        m.add(self.cold)
        m.add(self.helper())
        m('L_end:\ns_endpgm')
        if o.get('occ'): print(' '.join(str(sc.occ(g)) for g in range(sc.n()))); print('vgpr hi', V.hi, 'gdma', gdma, 'ge', ge, hg)
        k = K(KN + '_kernel', vgpr=256, agpr=256)
        k.lines = finalize2(m, not o.get('noalign'), 'v255' if o.get('trace') else None)
        txt = build([k], [(KN + '_kernel', 256, 256, 163840)])
        if o.get('trace'): txt = '; trace: ' + ' '.join(finalize2.names) + '\n' + txt
        return txt

if __name__ == '__main__':
    opt = dict(a.split('=') if '=' in a else (a, 1) for a in sys.argv[2:])
    open(sys.argv[1], 'w').write(Gen3(opt).build())
```

```python
import sys
import gen as G0
from gen3 import *

def sub_regs(reg, lo=0, hi=None):
    r = Regs(reg.t, 256, 256)
    for i in range(reg.b + lo, reg.b + (reg.n if hi is None else hi)): r.free_[i] = True
    return r

class Gen4(Gen3):
    def slot(self, it): return L_R + self.slots[it] * 16384
    def dma(self, it, split=True):
        s = Stream(); sT = self.sDM; pre = ''
        if it < 14 and it % 2 == 0: v, srd, so = self.vx, 's[40:43]', self.sXO[it // 2]
        elif it < 21:
            c = it // 2 if it < 14 else it - 14
            v, srd, so = self.vw, 's[44:47]', sT
            pre = f's_mul_i32 {sT}, {self.sXO[c]}, 1792\n'
        else:
            v, srd, so = self.vd, 's[48:51]', self.sDU[(it - 21) % 7]
            if it >= 28: pre = f's_add_u32 {sT}, {so}, {64*896}\n'; so = sT
        if it == 14: s('s_add_u32 s44, s44, 128\ns_addc_u32 s45, s45, 0\ns_sub_u32 s46, s46, 128'); s[:] = [[i for a in s for i in a]]
        s.atom(f's_add_u32 m0, {self.sLW}, {self.slot(it)}\n{pre}')
        for i in range(4): s(f'buffer_load_dwordx4 {v[i]}, {srd}, {so} offen offset:{1024 * i} lds', tag=f'it{it}')
        return s

    def clears(self):
        s = Stream()
        for q in range(2): s(f'buffer_store_dwordx4 {self.ff}, {self.av}, s[52:55], 0 offen offset:{64 * q} sc1', tag='clr')
        return s
    def setflags(self, p):
        s = Stream()
        if p == 0:
            s('@waitvm clr hst0')
            s.atom(f'''s_mov_b64 exec, 0xffff
            buffer_store_dwordx4 {self.ff}, {self.fs}, s[52:55], 0 offen sc1
            s_mov_b64 exec, -1''')
        else:
            s('@waitvm hst1')
            s.atom(f'''s_mov_b32 {self.sT2}, {FH13 - FH3}
            s_mov_b64 exec, 0xff
            buffer_store_dwordx4 {self.ff}, {self.fs}, s[52:55], {self.sT2} offen sc1
            s_mov_b64 exec, -1''')
        return s
    def kg_setup(self):
        s = Stream(); V = self.V; S = self.S; l = self.lane; sT = self.sT
        self.dt = V.alloc(2); self.kacc = V.alloc(16, 4); self.af = V.alloc(); self.sSC = S.alloc()
        t = V.alloc(); hl = V.alloc()
        s(f'''
        s_mul_i32 {self.sSC}, {self.sW}, 8704
        s_add_u32 {self.sSC}, {self.sSC}, {L_S}
        v_and_b32 {t}, 31, {l}
        v_mul_u32_u24 {t}, 272, {t}
        v_lshrrev_b32 {hl}, 5, {l}
        v_lshl_add_u32 {t}, {hl}, 4, {t}
        v_add_u32 {self.af}, {self.sSC}, {t}''')
        s2 = Stream()
        s2(f'''
        s_mov_b32 m0, {self.sSC}
        s_lshl_b32 {sT}, {self.sRG}, 4
        v_mov_b32 {t}, {f2h(LOG2E)}
        s_lshr_b32 {self.sLD}, {self.sLD}, {sT}
        s_lshl_b32 {self.sLD}, {self.sLD}, 16
        s_lshr_b32 {self.sDS}, {self.sDS}, {sT}
        s_lshl_b32 {self.sDS}, {self.sDS}, 16
        v_mul_f32 {t}, {self.sLD}, {t}
        v_exp_f32 {t}, {t}
        v_cvt_pk_bf16_f32 {t}, {t}, {t}
        v_lshlrev_b32 {self.dt[0]}, 16, {t}
        v_lshlrev_b32 {self.dt[1]}, 16, {t}''')
        V.free(t, hl)
        return s, s2
    def kg_unit(self, u, R, npk, Yf, Xf, dq):
        a = Stream(); b = Stream(); dt = self.dt; af = self.af
        P, tmp, cv, z, z2, z4, y8, c, X, wa = R
        grp = [0]; pend = []
        cur = lambda: a if grp[0] < npk else b
        def cm(items):
            s = cur()
            if s is a: return self.cmul_batch(s, items, tmp)
            for n, (d, x, y) in enumerate(items):
                t = tmp.sub(2 * (n % 2), 2)
                s(f'''v_mul_f32 {t[0]}, {x[0]}, {y[0]}
                v_mul_f32 {t[1]}, {x[0]}, {y[1]}
                v_fma_f32 {d[0]}, -{x[1]}, {y[1]}, {t[0]}
                v_fma_f32 {d[1]}, {x[1]}, {y[0]}, {t[1]}''')
        def emit(lst, neg=False):
            s = cur()
            if pend: s.append(pend.pop()); s(f's_mov_b32 m0, {self.sSC}')
            for n, (val, rows) in enumerate(lst): s(f'v_cvt_pk_bf16_f32 {cv[n]}, {val[0]}, {"-" if neg else ""}{val[1]}')
            w = sorted((r, n) for n, (val, rows) in enumerate(lst) for r in rows)
            if s is a:
                for r, n in w: s(f'ds_write_addtid_b32 {cv[n]} offset:{r * 272}')
                if dq and grp[0] >= dq[0][0] and grp[0] + 1 < npk:
                    _, h, x, y = dq.pop(0); s.append([Ins(i.text) for i in h]); s.append(x); pend.append(y)
            else:
                while w:
                    r, n = w.pop(0)
                    if w and w[0][0] // 4 == r // 4:
                        r2, n2 = w.pop(0)
                        s(f'ds_write2_b32 {wa[r // 4]}, {cv[n]}, {cv[n2]} offset0:{68 * (r % 4)} offset1:{68 * (r2 % 4)}')
                    else: s(f'ds_write_b32 {wa[r // 4]}, {cv[n]} offset:{272 * (r % 4)}')
            grp[0] += 1
        cc = [c.sub(2*n, 2) for n in range(8)]; XX = [X.sub(2*n, 2) for n in range(9)]; X2_ = cc
        s = cur()
        for n in range(6):
            s(f'v_lshlrev_b32 {P[n]}, 16, {self.par[n]}' if u == 0 else f'v_and_b32 {P[n]}, 0xffff0000, {self.par[n]}')
        if u == 0: self.stamp(s, 'k0a')
        A = P.sub(0, 2); B = P.sub(2, 2); C = P.sub(4, 2); y1 = cc[1]; T = cv
        for x in (A, B):
            if s is a: s(f'v_pk_mul_f32 {x}, {x}, {dt}')
            else: s(f'v_mul_f32 {x[0]}, {x[0]}, {dt[0]}\nv_mul_f32 {x[1]}, {x[1]}, {dt[0]}')
        s(f'''v_mul_f32 {A[0]}, {f2h(LOG2E)}, {A[0]}
        v_mul_f32 {A[1]}, 0.15915494, {A[1]}
        v_mul_f32 {T[0]}, 0x41000000, {A[0]}
        v_mul_f32 {T[1]}, 0x41000000, {A[1]}
        v_rndne_f32 {T[2]}, {A[1]}
        v_rndne_f32 {T[3]}, {T[1]}
        v_exp_f32 {T[4]}, {T[0]}
        v_sub_f32 {T[1]}, {T[1]}, {T[3]}
        v_sub_f32 {A[1]}, {A[1]}, {T[2]}
        v_cos_f32 {y1[0]}, {T[1]}
        v_sin_f32 {y1[1]}, {T[1]}
        v_exp_f32 {T[6]}, {A[0]}
        v_cos_f32 {z[0]}, {A[1]}
        v_sin_f32 {z[1]}, {A[1]}
        v_mov_b32 {cc[0][0]}, 1.0
        v_mov_b32 {cc[0][1]}, 0''')
        for x, k in ((y1, 4), (z, 6)):
            if s is a: s(f'v_pk_mul_f32 {x}, {x}, {T.sub(k, 2)} op_sel_hi:[1,0]')
            else: s(f'v_mul_f32 {x[0]}, {x[0]}, {T[k]}\nv_mul_f32 {x[1]}, {x[1]}, {T[k]}')
        cm([(cc[2], y1, y1), (XX[0], C, B), (z2, z, z)])
        cm([(cc[3], cc[2], y1), (cc[4], cc[2], cc[2]), (XX[1], XX[0], z), (z4, z2, z2), (XX[8], XX[0], y1)])
        cm([(cc[5], cc[4], y1), (cc[6], cc[4], cc[2]), (cc[7], cc[4], cc[3]), (y8, cc[4], cc[4])])
        emit([(cc[n], [n]) for n in range(8)])
        cm([(cc[n], cc[n], y8) for n in range(1, 8)])
        emit([(y8, [8])] + [(cc[n], [8 + n]) for n in range(1, 8)])
        cm([(cc[0], y8, y8)] + [(cc[n], cc[n], y8) for n in range(1, 8)])
        emit([(cc[n], [16 + n]) for n in range(8)])
        Vv = z
        cm([(Vv, cc[0], cc[0])])
        cm([(cc[n], cc[n], y8) for n in range(8)])
        emit([(cc[n], [24 + n]) for n in range(8)])
        s = a if grp[0] <= npk else b
        for st in range(8): s(f'ds_read_b128 {Yf.sub(4*st, 4)}, {af} offset:{32 * st}')
        cm([(XX[2], XX[0], z2), (XX[3], XX[1], z2), (XX[4], XX[0], z4), (XX[5], XX[1], z4)])
        cm([(XX[6], XX[2], z4), (XX[7], XX[3], z4)])
        emit([(XX[n], [n]) for n in range(8)], True)
        cm([(XX[n], XX[n], Vv) for n in (0, 4, 8, 2, 6)])
        cm([(X2_[0], XX[0], Vv), (X2_[1], XX[4], Vv), (X2_[2], XX[8], Vv)])
        emit([(XX[0], [8]), (XX[4], [10, 12]), (XX[8], [14]), (XX[2], [9]), (XX[6], [13]), (X2_[0], [16]), (X2_[1], [17]), (X2_[2], [18])], True)
        cm([(XX[0], X2_[0], Vv), (XX[1], X2_[1], Vv), (XX[2], X2_[2], Vv)])
        cm([(X2_[0], XX[0], Vv), (X2_[1], XX[2], Vv)])
        emit([(XX[0], [20]), (XX[1], [21]), (XX[2], [22]), (X2_[0], [24]), (X2_[1], [25])], True)
        for h in range(1, 4): cm([(X2_[2*h], X2_[2*h - 2], Vv), (X2_[2*h + 1], X2_[2*h - 1], Vv)])
        emit([(X2_[n], [24 + n]) for n in range(2, 8)], True)
        assert not pend
        s = a if npk >= 8 else b
        for st in range(8): s(f'ds_read_b128 {Xf.sub(4*st, 4)}, {af} offset:{32 * st}')
        mf = [f'v_mfma_f32_32x32x16_bf16 {self.kacc}, {Xf.sub(4*st, 4)}, {Yf.sub(4*st, 4)}, {self.kacc if (u or st) else 0}' for st in range(8)]
        return a, b, mf
    def kexch(self):
        V = self.V; l = self.lane; sT2 = self.sT2; acc = self.kacc
        s = Stream(); o = V.alloc(8, 2); keep = acc.sub(0, 8); got = acc.sub(8, 8)
        aw_ = V.alloc(); kq = V.alloc(); t = V.alloc(); hl = V.alloc(); msk = self.S.alloc(2, 2); sk = self.S.alloc()
        s.atom(f'''s_xor_b32 {sk}, {self.sW}, 1
        s_mul_i32 {sk}, {sk}, 8704
        s_add_u32 {sk}, {sk}, {L_S}
        v_add_u32 {aw_}, {self.sSC}, {self.l16}''')
        s.atom(f'''s_cmp_eq_u32 {self.sCG}, 0
        s_cselect_b64 {msk}, -1, 0''')
        for n in range(8): s(f'v_cndmask_b32 {o[n]}, {acc[n]}, {acc[8 + n]}, {msk}')
        s(f'''ds_write_b128 {aw_}, {o.sub(0, 4)}
        ds_write_b128 {aw_}, {o.sub(4, 4)} offset:1024''')
        for n in range(8): s(f'v_cndmask_b32 {keep[n]}, {acc[8 + n]}, {acc[n]}, {msk}')
        s(f'''v_add_u32 {aw_}, {sk}, {self.l16}
        s_mul_i32 {sk}, {self.sRG}, 4160
        s_add_u32 {sk}, {sk}, {L_K + 64}
        v_and_b32 {t}, 31, {l}
        v_lshl_add_u32 {kq}, {t}, 4, {sk}
        v_lshrrev_b32 {hl}, 5, {l}''')
        s2 = Stream()
        s2(f'''ds_read_b128 {got.sub(0, 4)}, {aw_}
        ds_read_b128 {got.sub(4, 4)}, {aw_} offset:1024''')
        s3 = Stream()
        for n in range(8): s3(f'v_add_f32 {keep[n]}, {keep[n]}, {got[n]}')
        d0 = aw_; d1 = V.alloc(); d2 = V.alloc(); d3 = V.alloc()
        s3.atom(f'''v_cmp_eq_u32 vcc, 0, {l}
        v_mov_b32 {t}, {self.sDS}
        v_lshl_add_u32 {d1}, {hl}, 3, {kq}
        v_cndmask_b32 {t}, 0, {t}, vcc''')
        s3(f'''v_add_f32 {t}, {keep[0]}, {t}
        v_cndmask_b32 {d1}, {d0}, {d1}, {msk}
        v_cvt_pk_bf16_f32 {o[0]}, {t}, {keep[1]}
        v_cvt_pk_bf16_f32 {o[1]}, {keep[2]}, {keep[3]}
        v_cvt_pk_bf16_f32 {o[2]}, {keep[4]}, {keep[4]}
        v_cvt_pk_bf16_f32 {o[3]}, {keep[5]}, {keep[6]}
        ds_write2_b64 {d1}, {o.sub(0, 2)}, {o.sub(2, 2)} offset1:64
        v_subrev_u32 {d0}, 1024, {d0}
        v_lshl_add_u32 {d3}, {hl}, 9, {kq}
        v_cndmask_b32 {d3}, {d3}, {d0}, {msk}
        v_cvt_pk_bf16_f32 {got[0]}, {keep[0]}, {keep[0]}
        v_cvt_pk_bf16_f32 {got[1]}, {keep[0]}, {keep[1]}
        v_cvt_pk_bf16_f32 {got[2]}, {keep[1]}, {keep[1]}
        v_cvt_pk_bf16_f32 {got[3]}, {keep[2]}, {keep[2]}
        ds_write_b128 {d3}, {got.sub(0, 4)} offset:1024
        v_subrev_u32 {d0}, 1024, {d0}
        v_lshl_add_u32 {d2}, {hl}, 10, {kq}
        v_cndmask_b32 {d2}, {d2}, {d0}, {msk}
        v_and_b32 {t}, 1, {l}''')
        s3.atom(f'''v_cmp_eq_u32 vcc, 0, {t}
        v_cvt_pk_bf16_f32 {got[4]}, {keep[4]}, {keep[4]}
        v_cvt_pk_bf16_f32 {got[5]}, {keep[4]}, {keep[4]}
        v_cndmask_b32 {keep[0]}, {keep[5]}, {keep[4]}, vcc
        v_cndmask_b32 {keep[1]}, {keep[7]}, {keep[6]}, vcc''')
        s3(f'''v_cvt_pk_bf16_f32 {got[6]}, {keep[0]}, {keep[5]}
        v_cvt_pk_bf16_f32 {got[7]}, {keep[5]}, {keep[5]}
        ds_write_b128 {d2}, {got.sub(4, 4)} offset:2048
        v_cvt_pk_bf16_f32 {o[4]}, {keep[6]}, {keep[6]}
        v_cvt_pk_bf16_f32 {o[5]}, {keep[6]}, {keep[6]}
        v_cvt_pk_bf16_f32 {o[6]}, {keep[1]}, {keep[7]}
        v_cvt_pk_bf16_f32 {o[7]}, {keep[7]}, {keep[7]}
        ds_write_b128 {d2}, {o.sub(4, 4)} offset:2560''')
        self.kx_free = lambda: (V.free(o, aw_, kq, t, hl, d1, d2, d3), self.S.free(msk, sk))
        return s, s2, s3
    def lds_init(self):
        s = Stream(); V = self.V; t = V.alloc(); z = V.alloc()
        s(f'''s_mul_i32 {self.sT}, {self.sRG}, 4160
        v_and_b32 {t}, 15, {self.lane}
        v_lshl_add_u32 {t}, {t}, 2, {self.sT}
        v_mov_b32 {z}, 0
        ds_write_b32 {t}, {z} offset:{L_K}''')
        V.free(t, z)
        return s

    def g1_reads(self, K):
        p, kk = divmod(K, 28); c, ks = divmod(kk, 4)
        w, off = win(self.slot(2 * c + 1 if p == 0 else 14 + c))
        buf = self.Wf[K % 3]; out = []
        for h in range(2):
            s = Stream()
            for t in range(2):
                s(f'ds_read_b64_tr_b16 {buf.sub(4*h + 2*t, 2)}, {self.aw[w]} offset:{off + h*8192 + ks*2048 + t*512}', tag=f'r{K}')
            if p == 0:
                wx, offx = win(self.slot(2 * c))
                s(f'ds_read_b128 {self.Xr.sub(8*kk + 4*h, 4)}, {self.ax[wx][ks]} offset:{offx + h*4096}', tag=f'r{K}')
            out.append(s)
        return out
    def G(self, p, kk, n=0):
        K = p * 28 + kk
        return 8 + 4 * K + n + (8 if K >= self.kpos else 0)
    def sync_chunks(self):
        d = {C: [C] for C in range(7)}
        if self.iopt('bar2', 1): d.update({7: [7, 8], 9: [9, 10], 11: [11, 12, 13]})
        else: d.update({C: [C] for C in range(7, 14)})
        return d
    def citems(self, C): return [2*C, 2*C + 1] if C < 7 else [7 + C]
    def gemm1(self, sc, mf0, mf1):
        sy = self.sync_chunks()
        sc.pre('@wait LG it0 it1\ns_barrier')
        for K in (0, 1):
            for x in self.g1_reads(K): sc.pre.add(x)
        for x in mf0: sc.mfma(x)
        sc.tail(7, Stream()('@wait r0'))
        for K in range(56):
            p, kk = divmod(K, 28)
            if K == self.kpos:
                for x in mf1: sc.mfma(x)
            buf = self.Wf[K % 3]
            rd = self.g1_reads(K + 2) if K + 2 < 56 else [Stream(), Stream()]
            for n in range(4):
                rt, mat = divmod(n, 2); a = self.acc[p][n]
                g = sc.mfma(f'v_mfma_f32_32x32x16_bf16 {a}, {buf.sub(4*mat, 4)}, {self.Xr.sub(8*kk + 4*rt, 4)}, {a if kk else 0}')
                assert g == self.G(p, kk, n)
                if n == 0 and K % 4 == 2 and ((K + 2) // 4 in sy or K == 54): sc.here()('s_barrier')
                if n % 2 == 0: sc.here().add(rd[n // 2])
            if K % 4 == 1 and (K + 3) // 4 in sy:
                its = [i for C in sy[(K + 3) // 4] for i in self.citems(C)]
                sc.tail(g, Stream()('@wait LG ' + ' '.join(f'it{i}' for i in its)))
            elif K == 53: sc.tail(g, Stream()('@wait LG'))
            elif K + 1 < 56: sc.tail(g, Stream()(f'@wait r{K + 1}'))
    def bar_gap(self, C):
        K = 4 * C - 2; return self.G(K // 28, K % 28, 0)

    def conv(self, sc):
        F = self.cF
        def reads(r):
            o = Stream(); b = F[r % 2]
            for n in range(4):
                c = r + 8 * n
                for t in range(2):
                    o(f'ds_read_b64_tr_b16 {b.sub(4*n + 2*t, 2)}, {self.ak} offset:{128*c + 32*(1 - t)}', tag=f'cv{r}')
                o(f'ds_read_b128 {b.sub(16 + 4*n, 4)}, {self.au} offset:{(16*n + 14 - 2*r) * 64}', tag=f'cv{r}')
            return o
        first_reads = reads(0)
        order = [(0, 0), (0, 1), (1, 0), (0, 2), (1, 1), (2, 0), (0, 3), (1, 2), (2, 1), (3, 0)]
        for r in range(8):
            nx = reads(r + 1) if r < 7 else Stream()
            b = F[r % 2]; seen = set()
            sc.tail(sc.n() - 1, Stream()(f'@wait cv{r}'))
            for n, (i, d) in enumerate(order):
                z = self.Z[i + d]
                first = (r == 0 and (i + d) not in seen); seen.add(i + d)
                sc.mfma(f'v_mfma_f32_32x32x16_bf16 {z}, {b.sub(4*i, 4)}, {b.sub(16 + 4*d, 4)}, {0 if first else z}')
                if n % 2 == 0: sc.here().add(nx[3 * (n // 2):3 * (n // 2) + 3])
        return first_reads
    def d_reads(self, p, n, dst):
        s = Stream(); it = 21 + 7*p + n
        w, off = win(self.slot(it))
        s(f'@waitvm it{it}')
        for fr in range(2):
            for dt in range(2):
                for t in range(2):
                    s(f'ds_read_b64_tr_b16 {dst.sub(8*fr + 4*dt + 2*t, 2)}, {self.ad[dt][w]} offset:{off + fr*2048 + t*1024}', tag=f'dr{it}')
        return s

    def plan_dma(self, nd0, c0):
        I = self.iopt; G = self.G; sy = self.sync_chunks()
        npre = I('npre', 3); dr0 = G(1, I('dr0', 20)); self.drs = {}
        for n in range(7): self.drs[n] = (dr0 + 8 * n) if n < npre else (c0 + I('dr1', 20) + I('drs1', 8) * (n - npre))
        bars = sorted(sy) + [14]
        def freed(it):
            if it >= 28: return 10**6
            if it >= 21: return self.drs[it - 21] + 10
            C = it // 2 if it < 14 else it - 7
            return self.bar_gap(min(b for b in bars if b > C)) + 1
        def need(it):
            if it < 21:
                C = it // 2 if it < 14 else it - 7
                b = max(x for x in sy if x <= C)
                return self.bar_gap(b) - 1 if b else -1
            return self.drs[it - 21] if it < 28 else 10**6
        free = {k: 0 for k in range(1, 8)}
        self.kbar = min(b for b in bars if b > 7)
        free[0] = self.bar_gap(self.kbar) + 1
        self.slots = {}; self.iss = {}
        order = self.korder + list(range(7, 35))
        for it in order:
            k = min(free, key=lambda k: (free[k], k == 0))
            self.slots[it] = k; self.iss[it] = free[k]; free[k] = freed(it)
        self.need = need
        return order

    def build(self):
        V = self.V; A = self.A; S = self.S; o = self.opt; I = self.iopt; F = lambda n, d: float(o.get(n, d))
        for k in COST: COST[k] = F('c_' + k, COST[k])
        self.npk1 = I('npk1', 0); self.kpos = 28 if self.npk1 < 8 else 0
        nd0 = I('nd0', 2); nk = I('nk', 2); self.korder = [1, 0, 3, 2, 4, 5, 6]
        c0 = self.G(1, 27, 3) + 1
        order = self.plan_dma(nd0, c0); G0.slot = self.slot; globals()['slot'] = self.slot
        import gen3; gen3.slot = self.slot
        m = Stream()
        m.add(self.entry())
        head, tail = self.prologue(); m.add(head)
        tail.add(self.addrs()); tail.add(self.misc_addrs()); tail.add(self.lds_init())
        ks1, ks2 = self.kg_setup(); tail.add(ks1)
        self.sCnt = S.alloc(); self.sHO = S.alloc()
        self.Xr = A.alloc(224, 4); AW = A.alloc(32, 4); self.Wf = [AW.sub(8*i, 8) for i in range(3)]
        big = V.alloc(112, 4); blk = V.alloc(64, 4)
        kr = sub_regs(big)
        cX = kr.alloc(36, 4); Y1 = kr.alloc(32, 4)
        R = [kr.alloc(6), None, kr.alloc(8), kr.alloc(2), kr.alloc(2), kr.alloc(2), kr.alloc(2), cX.sub(0, 16), cX.sub(16, 18), kr.alloc(8, 1)]
        tmp_small = kr.alloc(4)
        wa = R[9]
        tail(f'v_lshl_add_u32 {wa[0]}, {self.lane}, 2, {self.sSC}')
        for i in range(1, 8): tail(f'v_add_u32 {wa[i]}, {1088 * i}, {wa[0]}')
        d = Stream()
        for it in order[:nd0]: d.add(self.dma(it))
        m.add(sprinkle(tail, d, I('ev00', 0), I('ev0', 12)))
        self.stamp(m, 'pro')
        m.add(ks2)
        ngrp = 8 + self.npk1; dq = []
        for j, it in enumerate(order[nd0:nd0 + nk]):
            x = self.dma(it); dq += [[0, x[0], x[1], x[2]], [0, x[0], x[3], x[4]]]
        kd = ngrp - 1 - len(dq) - (1 if self.npk1 else 0) - I('kd', 0)
        class TmpSel:
            pass
        R0 = list(R); R0[1] = blk.sub(0, 16)
        for e in dq: e[0] = kd
        a0_, b0_, mf0 = self.kg_unit(0, R0, 8, self.Xr.sub(96, 32), self.Xr.sub(128, 32), dq)
        for e in dq: e[0] = kd - 8
        class Dual(Reg):
            pass
        w1 = blk.sub(0, 16)
        self_cm = self.cmul_batch
        R1 = list(R); R1[1] = tmp_small
        self.cmul_batch = lambda s, items, tmp: self_cm(s, items, w1)
        a1_, b1_, mf1 = self.kg_unit(1, R1, self.npk1, Y1, cX.sub(0, 32), dq)
        self.cmul_batch = self_cm
        assert not dq
        clr = self.clears()
        m.add(a0_); self.stamp(m, 'k1a'); m.add(a1_)
        V.free(self.pfreg)
        self.stamp(m, 'kgen')
        self.acc = [[blk.sub(16*i, 16) for i in range(4)], [big.sub(16*i, 16) for i in range(4)]]
        sc = Sched(I('budget', 5)); G = self.G
        self.gemm1(sc, mf0, mf1)
        self.Z = self.acc[0]; self.D = self.Xr.sub(0, 112); self.Hf = big
        self.cF = [self.Xr.sub(160, 32), AW]
        assert c0 == sc.n()
        fr0 = self.conv(sc); a0 = sc.n()
        sc.even(fr0, G(1, 26, 0), per=3)
        self.acc2 = [self.kacc] + [self.Xr.sub(112 + 16*i, 16) for i in range(3)]
        nl = I('nlast', 2); b0 = a0 + 56
        use = lambda p, n: (a0 + 8*n) if p == 0 else (b0 + 8*min(n, 7 - nl))
        for n in range(7):
            for fr in range(2):
                for sl in range(4): self.g2(sc, 0, n, fr, sl)
        for n in range(7 - nl):
            for fr in range(2):
                for sl in range(4): self.g2(sc, 1, n, fr, sl)
        done = {}
        for sl in (1, 2, 3, 0):
            for n in range(7 - nl, 7):
                for fr in range(2): done[sl] = self.g2(sc, 1, n, fr, sl)
        e1 = sc.n()
        tu = G(1, I('tu', 10))
        sc.mem(self.dbg_load(0), tu)
        self.V = sub2 = sub_regs(big, 64, 112)
        uf = self.u_fetch()
        gu = tu + I('tu2', 20) | 1
        sc.at(gu - 1, uf[:1]); sc.at(gu, uf[1:])
        sc.mem(clr, G(1, I('c0', 0)), step=F('cev', 8))
        gf0 = G(1, I('e0end', 19)) + I('f0', 22); assert gf0 > gu
        sc.mem(self.setflags(0), gf0)
        g = 0
        for it in order[nd0 + nk:]:
            g = max(g, self.iss[it])
            st = F('s0', 2) if it < 14 else (F('s1', 2) if it < 28 else F('s2', 2))
            d = Stream()
            prev = [x for x in order[:order.index(it)] if self.slots[x] == self.slots[it]]
            if prev and prev[-1] >= 21: d(f'@waitlg dr{prev[-1]}')
            d.add(self.dma(it))
            wh, g = sc.mem(d, g, step=st)
            assert wh[-1] < self.need(it), (it, wh, self.need(it))
            if o.get('occ'): print(it, 'slot', self.slots[it], wh, 'need', self.need(it))
        gdma = g
        for n in range(7):
            assert self.drs[n] >= G(1, 2*n + 2) and self.drs[n] + 10 < use(0, n)
            sc.even(self.d_reads(0, n, self.D.sub(16*n, 16)), self.drs[n], per=2)
        hg = {}; g = max(gdma, a0 - I('h0', 32))
        for p in range(2):
            if p: g = max(g, b0 - I('h1', 28))
            for n in range(7):
                if p: g = max(g, a0 + 8*n + 7)
                x = Stream(); x.atom(self.h_so(p, n, self.sHO))
                for k in range(4): x(self.h_ld(p, n, k, self.sHO), tag=f'h{p}{n}')
                wh, g = sc.mem(x, g, step=F('hstep', 2))
                for k in range(4): hg[p, n, k] = wh[k]
                assert wh[3] < use(p, n) - 1
        if len(b1_): sc.place(b1_, 0, G(0, 27, 1))
        V.free(self.vx, self.par, self.dt, self.af, *self.ax)
        self.V = V; k1, k2, k3 = self.kexch()
        assert self.kpos == 28
        sc.at(G(0, 27, 3), self.st('p0'))
        self.V = sub2
        e0 = Stream(); parts = self.epi(0, 'woven')
        for n, (kind, x) in enumerate(parts):
            e0.add(x)
            if n % 2 == 1: e0(self.hst(0, n // 2), tag='hst0')
        kb = self.bar_gap(11)
        sc.place(k1, self.bar_gap(self.kbar) + 1, kb - 1)
        ge = sc.place(e0, G(0, 27, 3) + 2, G(1, I('e0end', 19)), dense=True)
        sc.at(ge, self.st('e0'))
        sc.place(k2, max(kb, ge) + 1, max(kb, ge) + 2)
        k3.add(self.u_put())
        sc.place(k3, max(kb, ge) + 4, self.bar_gap(14) - 1)
        sub2.free(self.et, self.eo); self.V = V; self.kx_free()
        sc.at(G(1, 27, 3), self.st('p1'))
        V.free(self.vw, self.ff, self.aw)
        pld = f'buffer_load_dword {self.fl}, {self.fp}, s[52:55], 0 offen sc1'
        self.V = sub2; mode = o.get('epi', 'pk'); parts = self.epi(1, mode); self.V = V
        g = c0 - 1; per = len(parts) // 2
        for n, (kind, x) in enumerate(parts):
            if n == len(parts) - 1: x(pld)
            if n % per == per - 1: x(self.hst(1, 2 * (n // per)), tag='hst1'); x(self.hst(1, 2 * (n // per) + 1), tag='hst1')
            if kind == 'pk':
                one = Stream(); one.append([i for a in x for i in a]); sc.at(g, one)
                if n + 1 < len(parts) and parts[n + 1][0] != 'pk': g += 1
            else: g = sc.place(x, g, a0, dense=True, budget=I('eb', 10))
        sc.at(g, self.st('epi1'))
        assert g < hg[0, 0, 0] - 2, (g, hg[0, 0, 0])
        gf1 = g + I('f1', 24); gf1 += gf1 & 1
        sc.at(gf1, self.setflags(1))
        pc = Stream(); self.poll_check(pc, pld, self.fl)
        sc.at(hg[0, 0, 0] - 2, pc[:1]); sc.at(hg[0, 0, 0] - 1, pc[1:])
        sc.at(hg[0, 0, 0] + 1, self.g_load())
        sc.at(a0 - 1, self.st('conv'))
        pld = f'buffer_load_dword {self.fl}, {self.fh}, s[52:55], 0 offen sc1'
        gp = hg[1, 0, 0] - 1 - I('p3', 20); gp -= gp & 1
        sc.gaps[gp](pld)
        pc = Stream(); self.poll_check(pc, pld, self.fl)
        sc.at(hg[1, 0, 0] - 2, pc[:1]); sc.at(hg[1, 0, 0] - 1, pc[1:])
        for n in range(7):
            lo = max(a0 + 8*n + 8, use(1, n) - I('dl', 14) - (8 * (6 - n) if n >= 7 - nl else 0))
            ge_ = sc.even(self.d_reads(1, n, self.D.sub(16*n, 16)), lo, per=2)
            assert ge_ < use(1, n) - 1
        for n in range(7):
            sc.tail(use(0, n) - 1, Stream()(f'@wait dr{21 + n} h0{n}'))
            if n < 7 - nl: sc.tail(use(1, n) - 1, Stream()(f'@wait dr{28 + n} h1{n}'))
            else: sc.tail(use(1, n) - 1 + 2 * (n - 7 + nl), Stream()(f'@wait dr{28 + n} h1{n}'))
        cp1, cp2, cp3, cp4 = self.convpost()
        g = sc.place(cp1, a0 + 2, b0, dense=True, budget=I('cb', 6))
        sc.gaps[g]('@waitlg carry\ns_barrier')
        g = sc.place(cp2, g, b0, dense=True); g = sc.place(cp3, g + 1, b0, dense=True)
        g = max(g, a0 + I('as', 0)); g += g & 1
        sc.at(g, cp4[:1]); g += 2; sc.at(g, cp4[1:])
        sc.at(g, self.st('ast'))
        sc.at(b0 - 1, self.st('g2a'))
        self.V = sub3 = sub_regs(blk)
        self.ga = sub3.alloc(16, 2); self.ab = sub3.alloc(8, 2)
        pre, wr, fin1, fin2 = self.final(); pre.add(self.a_addr()); self.V = V
        gl = e1 - I('al', 14)
        sc.place(pre, g + 2, min(gl, done[1]))
        sc.mem(Stream()(self.a_ld()), gl)
        for k in (1, 2, 3): sc.place(wr[k], done[k] + 1, min(e1, done[k] + 1 + 2*nl))
        ap1, ap2 = self.a_prep()
        for g in range(7, sc.n(), 16): sc.at(g, self.st(f'g{g + 1}'))
        m.add(self.dropper(sc.out()))
        self.stamp(m, 'g2b')
        m.add(fin1); m.add(ap1); m.add(ap2); m.add(fin2)
        self.stamp(m, 'end'); self.stamp(m, 'e', real=True)
        self.stamp_out(m)
        m('s_endpgm')
        m.add(self.cold)
        m.add(self.helper())
        m('L_end:\ns_endpgm')
        if o.get('occ'): print(' '.join(str(int(sc.occ(g))) for g in range(sc.n()))); print('vgpr hi', V.hi, 'gdma', gdma, 'ge', ge, 'c0', c0, 'a0', a0, hg[0, 0, 0], hg[1, 0, 0], hg[1, 6, 3])
        k = K(KN + '_kernel', vgpr=256, agpr=256)
        k.lines = finalize2(m, not o.get('noalign'), 'v255' if o.get('trace') else None)
        txt = build([k], [(KN + '_kernel', 256, 256, 163840)])
        if o.get('trace'): txt = '; trace: ' + ' '.join(finalize2.names) + '\n' + txt
        return txt
    def dropper(self, body):
        drop = self.opt.get('drop', '').split(',')
        if drop == ['']: return body
        nb = Stream()
        for a in body:
            i = a[0]
            if len(a) == 1:
                if i.kind == 'pseudo' and i.op in ('wait', 'waitvm', 'waitlg'):
                    keep = [t for t in i.arg if not (('dma' in drop and t.startswith(('it', 'udma')) and t not in ('it0', 'it1')) or ('vm' in drop and t[0] == 'h') or ('ds' in drop and t[0] in 'rcd' and t != 'clr') or ('vm' in drop and t.startswith('hst')))]
                    if keep or not i.arg: nb(f'@{i.op} ' + ' '.join(keep))
                    continue
                if 'dma' in drop and i.kind == 'dma': continue
                if 'bar' in drop and i.kind == 'barrier': continue
                if 'mfma' in drop and i.kind == 'mfma': continue
                if 'ds' in drop and i.kind == 'ds': continue
                if 'dsw' in drop and i.kind == 'ds' and 'write' in i.op and not i.tag: continue
                if 'valu' in drop and i.kind in ('valu', 'trans') and not i.op.startswith(('v_add_u32', 'v_lshl', 'v_lshr', 'v_bfe', 'v_and', 'v_xor', 'v_mul_u32', 'v_sub', 'v_cnd')): continue
                if 'vm' in drop and i.kind == 'vmem' and i.tag != 'clr': continue
            if 'valu' in drop and len(a) > 6 and i.op.startswith('v_pk'): a = [x for x in a if x.kind == 'vmem'] or [Ins('s_nop 0')]
            if 'st' in drop: a = [x if not (x.kind == 'vmem' and 'store_dwordx4' in x.op) else Ins(x.text.replace(' sc1', ''), x.tag) for x in a]
            if i.kind == 'branch' and 'vcc' in i.op: a = a[1:]
            nb.append(a)
        return nb

if __name__ == '__main__':
    opt = dict(a.split('=') if '=' in a else (a, 1) for a in sys.argv[2:])
    open(sys.argv[1], 'w').write(Gen4(opt).build())
```

```python
import sys
import gen as G0, gen2 as G2, gen3 as G3, gen4 as G4
from gen4 import *
L_U = 8320; USTR = 5056; UPAD = 960
L_S = 14336
L_C = 18432
for M in (G0, G2, G3, G4): M.L_S = L_S; M.L_C = L_C

class Gen5(Gen4):
    def helper(self):
        s = Stream(); l = self.lane; W = self.sW; o = self.opt
        V = Regs('v', 256, 8); T = 's3'; T2 = 's95'; T3 = 's94'
        hst = [0]
        def stamp():
            if o.get('trace'): s(f'@tr h{hst[0]}'); hst[0] += 1
        def flag(txt, n, ex=1):
            s.atom(f'''s_cmp_eq_u32 {W}, 0
            s_cbranch_scc0 L_h{n}
            s_mov_b64 exec, {ex}
            {txt}
            s_mov_b64 exec, -1
            L_h{n}:''', tag='nocount')
        s('@forget\n@trreset\nL_helper:')
        r8 = V.alloc(); c8 = V.alloc(); t = V.alloc(); t2 = V.alloc(); vx = V.alloc(2); zero = V.alloc(4); fo = V.alloc(); to = V.alloc()
        tw = V.alloc(); fg = V.alloc(); d = V.alloc(4); one = V.alloc(4); fd = V.alloc(); fo2 = V.alloc()
        s(f'''
        s_and_b32 {T}, s2, 7
        s_lshr_b32 {T2}, s2, 3
        s_lshl2_add_u32 {T3}, {T}, {T2}
        s_lshr_b32 {T}, {T}, 1
        s_lshl2_add_u32 {T}, {T}, {T2}        ; hid
        s_mul_i32 {T}, {T}, {28*3584}
        s_and_b32 {T2}, s2, 1
        s_mul_i32 {T2}, {T2}, {7*256}
        s_add_u32 {T}, {T}, {T2}
        v_min_u32 {to}, 195, v0
        v_mul_u32_u24 {tw}, 9363, {to}
        v_lshrrev_b32 {tw}, 16, {tw}
        v_mul_u32_u24 {tw}, {3584 - 7*256}, {tw}
        v_lshl_add_u32 {tw}, {to}, 8, {tw}
        v_add_u32 {tw}, {T}, {tw}
        v_mov_b32 {zero[0]}, 0
        v_mov_b32 {zero[1]}, 0
        v_mov_b32 {zero[2]}, 0
        v_mov_b32 {zero[3]}, 0
        v_mov_b32 {one[0]}, -1
        v_mov_b32 {one[1]}, -1
        v_mov_b32 {one[2]}, -1
        v_mov_b32 {one[3]}, -1
        s_mul_i32 {T}, s2, {84*128}
        s_add_u32 {T}, {T}, {FHOFF}
        v_lshl_add_u32 {fo}, v0, 4, {T}
        v_add_u32 {fo2}, 8192, {fo}
        s_lshl_b32 {T}, {T3}, 7
        s_add_u32 {T}, {T}, {FG3}
        v_and_b32 {fg}, 7, v0
        v_lshl_add_u32 {fg}, {fg}, 4, {T}
        v_cmp_lt_u32 vcc, 159, v0
        v_cndmask_b32 {fo2}, {fo2}, {fg}, vcc
        v_mov_b32 {t}, 0x7fffff00
        v_cmp_gt_u32 vcc, 168, v0
        v_cndmask_b32 {fo2}, {t}, {fo2}, vcc
        v_lshrrev_b32 {r8}, 3, {l}
        v_and_b32 {c8}, 7, {l}
        v_lshrrev_b32 {t2}, 4, {l}
        s_lshl2_add_u32 {T}, {T3}, {W}
        s_mul_i32 {T}, {T}, {16*896}
        v_mul_u32_u24 {t}, 896, {r8}
        v_add_u32 {t}, {T}, {t}
        v_xor_b32 {t2}, {c8}, {t2}
        v_lshl_add_u32 {vx[0]}, {t2}, 4, {t}
        v_xor_b32 {t2}, 4, {t2}
        v_lshl_add_u32 {vx[1]}, {t2}, 4, {t}
        v_add_u32 {vx[1]}, {8*896 - 1024}, {vx[1]}
        s_lshl_b32 {T}, {T3}, 2
        v_mov_b32 {fd}, {T}
        s_mul_i32 {T}, s2, 196
        v_add_u32 {to}, {T}, {to}
        v_lshlrev_b32 {to}, 8, {to}
        s_waitcnt lgkmcnt(0)''')
        self.srd(s, 52, 's36', 's37', WSB)
        s(f'''s_mov_b32 {T}, 4096
        buffer_store_dwordx4 {zero}, {fo}, s[52:55], 0 offen sc1
        buffer_store_dwordx4 {zero}, {fo}, s[52:55], {T} offen sc1
        buffer_store_dwordx4 {zero}, {fo2}, s[52:55], 0 offen sc1''', tag='fc')
        self.srd(s, 40, 's4', 's5', 2048 * 896)
        a = V.alloc(); uo = V.alloc(); ub = V.alloc(56, 2); bw = V.alloc(); br = V.alloc()
        B0 = 65536
        s(f'''
        v_bfe_u32 {t}, {l}, 2, 2
        v_lshrrev_b32 {t2}, 4, {l}
        v_lshl_add_u32 {a}, {t}, 2, {t2}
        v_lshlrev_b32 {a}, 7, {a}
        v_lshrrev_b32 {bw}, 5, {l}
        v_lshl_add_u32 {t}, {t}, 1, {bw}
        v_bfe_u32 {bw}, {l}, 1, 1
        s_lshl_b32 {T}, {W}, 1
        v_add_u32 {bw}, {T}, {bw}
        v_xor_b32 {t}, {t}, {bw}
        v_lshl_add_u32 {a}, {t}, 4, {a}
        v_and_b32 {t}, 1, {l}
        v_lshl_add_u32 {a}, {t}, 3, {a}
        s_mul_i32 {T}, {W}, {7*16*144}
        s_add_u32 {T}, {T}, {B0}
        v_and_b32 {t}, 15, {l}
        v_mul_u32_u24 {t}, 144, {t}
        v_lshl_add_u32 {t}, {t2}, 4, {t}
        v_add_u32 {bw}, {T}, {t}
        v_mul_u32_u24 {t}, 144, {r8}
        v_lshl_add_u32 {t}, {c8}, 4, {t}
        v_add_u32 {br}, {T}, {t}
        v_lshlrev_b32 {uo}, 12, {r8}
        v_lshl_add_u32 {uo}, {c8}, 4, {uo}''')
        tW = f'global_load_dword {d[0]}, {tw}, s[24:25] offset:128\nglobal_load_dword {d[1]}, {tw}, s[26:27] offset:128'
        tD = f'global_load_dword {d[2]}, {to}, s[28:29]\nglobal_load_dword {d[3]}, {to}, s[28:29] offset:128'
        def xdma():
            s(f's_lshl_b32 {T2}, {W}, 11')
            for c in range(7):
                s(f'''s_add_u32 m0, {T2}, {c * 8192}
                s_mov_b32 {T}, {c * 128}
                buffer_load_dwordx4 {vx[0]}, s[40:43], {T} offen lds
                buffer_load_dwordx4 {vx[1]}, s[40:43], {T} offen offset:1024 lds''', tag='hx')
        def flagA():
            s('@waitvm fc\ns_barrier'); flag(f'global_store_dword {fd}, {one[0]}, s[34:35] sc1', 0); stamp()
        for c in o.get('hord', 'AWXD'):
            if c == 'A': flagA()
            if c == 'W': s(tW)
            if c == 'D': s(tD)
            if c == 'X': xdma()
        stamp()
        s(f'''s_lshl_b32 {T}, {W}, 16
        s_lshl_b32 {T2}, {T3}, 7
        s_add_u32 {T2}, {T2}, {T}
        s_add_u32 {T2}, {T2}, {UOFF}
        @waitvm hx
        s_barrier''')
        stamp()
        for n in range(7):
            for A in range(2):
                for tt in range(2):
                    s(f'ds_read_b64_tr_b16 {ub.sub(8*n + 4*A + 2*tt, 2)}, {a} offset:{n*8192 + A*4096 + tt*2048}')
        for n in range(8):
            if n < 7:
                for A in range(2): s(f'ds_write_b128 {bw}, {ub.sub(8*n + 4*A, 4)} offset:{n*16*144 + 64*A}')
                for h in range(2): s(f'ds_read_b128 {ub.sub(8*n + 4*h, 4)}, {br} offset:{n*16*144 + h*8*144}')
            if n:
                for h in range(2):
                    s(f's_add_u32 {T}, {T2}, {(n - 1) * 64 * 4096 + h * 8 * 4096}')
                    s(f'buffer_store_dwordx4 {ub.sub(8*(n - 1) + 4*h, 4)}, {uo}, s[52:55], {T} offen sc1', tag='ust')
        stamp()
        gs = V.alloc(56, 2); go = V.alloc(); xs = V.alloc(56, 2); xa = V.alloc(2)
        s(f'''v_and_b32 {go}, 3, v0
        v_lshlrev_b32 {t2}, 1, {go}
        v_lshlrev_b32 {go}, 5, {go}
        v_lshrrev_b32 {t}, 2, v0
        v_bfe_u32 {xa[0]}, v0, 3, 3
        v_xor_b32 {t2}, {t2}, {xa[0]}
        v_lshlrev_b32 {t}, 7, {t}
        v_lshl_add_u32 {xa[0]}, {t2}, 4, {t}
        v_xor_b32 {xa[1]}, 16, {xa[0]}''')
        for j in range(14): s(f'ds_read_b128 {xs.sub(4*j, 4)}, {xa[j%2]} offset:{8192*(j//2)}')
        s('@waitvm ust\ns_barrier')
        flag(f'global_store_dword {fd}, {one[0]}, s[34:35] offset:128 sc1', 1)
        stamp()
        for j in range(14): s(f'global_load_dwordx4 {gs.sub(4*j, 4)}, {go}, s[30:31] offset:{128*(j//2) + 16*(j%2)}')
        acc = V.alloc(2); p = V.alloc(8)
        s(f'v_mov_b32 {acc[0]}, 0\nv_mov_b32 {acc[1]}, 0')
        for j in range(0, 56, 2):
            Q = [p.sub(0, 4), p.sub(4, 4)]
            for h in range(2):
                x, g = xs[j + h], gs[j + h]; q = Q[h]
                s(f'''v_lshlrev_b32 {q[0]}, 16, {x}
                v_and_b32 {q[1]}, 0xffff0000, {x}
                v_lshlrev_b32 {q[2]}, 16, {g}
                v_and_b32 {q[3]}, 0xffff0000, {g}''')
            for q in Q: s(f'v_pk_mul_f32 {q.sub(0, 2)}, {q.sub(0, 2)}, {q.sub(2, 2)}')
            for q in Q: s(f'v_cvt_pk_bf16_f32 {q[2]}, {q[0]}, {q[1]}')
            for q in Q: s(f'v_lshlrev_b32 {q[0]}, 16, {q[2]}\nv_and_b32 {q[1]}, 0xffff0000, {q[2]}')
            for q in Q: s(f'v_pk_add_f32 {acc}, {acc}, {q.sub(0, 2)}')
        s(f'''v_add_f32 {acc[0]}, {acc[0]}, {acc[1]}
        v_add_f32_dpp {acc[0]}, {acc[0]}, {acc[0]} quad_perm:[1,0,3,2] row_mask:0xf bank_mask:0xf
        v_add_f32_dpp {acc[0]}, {acc[0]}, {acc[0]} quad_perm:[2,3,0,1] row_mask:0xf bank_mask:0xf
        v_cvt_pk_bf16_f32 {t}, {acc[0]}, {acc[0]}
        v_lshlrev_b32 {t}, 16, {t}
        v_mul_f32 {t}, {f2h(-LOG2E)}, {t}
        v_exp_f32 {t}, {t}
        v_add_f32 {t}, 1.0, {t}
        v_rcp_f32 {t}, {t}
        v_cvt_pk_bf16_f32 {t}, {t}, {t}
        v_lshlrev_b32 {acc[0]}, 16, {t}
        v_sub_f32 {t}, 1.0, {acc[0]}
        v_cvt_pk_bf16_f32 {t}, {t}, {t}
        v_lshlrev_b32 {acc[1]}, 16, {t}
        v_lshrrev_b32 {t}, 2, v0
        v_lshlrev_b32 {t}, 3, {t}
        s_lshl_b32 {T}, {T3}, 9
        s_add_u32 {T}, {T}, {GOFF}
        s_mov_b32 exec_lo, 0x11111111
        s_mov_b32 exec_hi, 0x11111111
        buffer_store_dwordx2 {acc}, {t}, s[52:55], {T} offen sc1
        s_mov_b64 exec, -1
        s_waitcnt vmcnt(0)
        s_barrier''')
        flag(f'buffer_store_dwordx4 {one}, {fg}, s[52:55], 0 offen sc1', 2, '0xff')
        stamp(); self.stamp(s, 'e', real=True); self.stamp_out(s)
        s('s_endpgm')
        return s
    def dbg_load(self, which):
        s = Stream()
        self.dbgld = f'global_load_dword {self.fl}, {self.fa}, s[34:35] offset:{128 * which} sc1'
        s(self.dbgld)
        return s
    def early_init(self):
        s = Stream(); V = self.V; t = V.alloc(); z = V.alloc(); t2 = V.alloc()
        s(f'''v_mov_b32 {z}, 0
        v_min_u32 {t}, 239, v0
        v_lshlrev_b32 {t}, 2, {t}
        v_and_b32 {t2}, 15, v0
        v_lshlrev_b32 {t2}, 2, {t2}
        ds_write_b32 {t}, {z} offset:{L_U}
        ds_write_b32 {t}, {z} offset:{L_U + USTR}
        ds_write_b32 {t2}, {z} offset:{L_K}
        ds_write_b32 {t2}, {z} offset:{L_K + 4160}''')
        V.free(t, z, t2)
        return s
    def rot_code(self, s, mode, dst):
        sT2 = self.sT2
        if mode == 'ci': s(f's_lshl1_add_u32 {dst}, {sT2}, {self.sCOL}')
        elif mode == 'c': s(f's_mov_b32 {dst}, {self.sCOL}')
        elif mode == 'i': s(f's_lshl_b32 {dst}, {sT2}, 1')
        elif mode == 'cx': s(f's_and_b32 {dst}, {self.sM}, 6\ns_add_u32 {dst}, {dst}, {self.sCOL}')
        elif mode == 'x': s(f's_and_b32 {dst}, {self.sM}, 7')
        else: s(f's_mov_b32 {dst}, 0')
        s(f's_lshl_b32 {dst}, {dst}, 7')
    def prologue(self):
        s = Stream(); V = self.V; S = self.S; l = self.lane; W = self.sW
        sM = self.sM = S.alloc(); sRB = self.sRB = S.alloc(); sCB = self.sCB = S.alloc()
        sCOL = self.sCOL = S.alloc(); sR64 = self.sR64 = S.alloc()
        sRG = self.sRG = S.alloc(); sCG = self.sCG = S.alloc()
        sT = self.sT = S.alloc(); sT2 = self.sT2 = S.alloc(); self.sLW = S.alloc()
        XO = self.sXO = S.alloc(7, 1); self.sDM = S.alloc()
        po = V.alloc()
        s(f'''
        s_sub_u32 {sM}, s2, 32
        s_lshl_b32 {sT}, {sM}, 10
        v_lshl_add_u32 {po}, v0, 2, {sT}
        s_lshr_b32 {sT}, {sM}, 3            ; j
        s_and_b32 {sT2}, {sM}, 6
        s_lshl_b32 {sRB}, {sT2}, 1
        s_and_b32 {sT2}, {sT}, 3
        s_add_u32 {sRB}, {sRB}, {sT2}       ; rb
        s_lshr_b32 {sCOL}, {sT}, 2          ; col
        s_and_b32 {sR64}, {sM}, 7
        s_lshl2_add_u32 {sR64}, {sR64}, {sT2}''')
        self.rot_code(s, self.opt.get('r1', 'ci'), sT)
        for c in range(2):
            s(f'''s_cmp_ge_u32 {sT}, 896
            s_cselect_b32 {sT2}, 896, 0
            s_sub_u32 {XO[c]}, {sT}, {sT2}''')
            if c == 0: s(f's_add_u32 {sT}, {XO[c]}, 128')
        s(f'''
        s_and_b32 {sT2}, {sM}, 1
        s_mul_i32 {sCB}, {sT2}, 7
        s_add_u32 {sCB}, {sCB}, {sCOL}      ; cb
        s_lshr_b32 {sRG}, {W}, 1
        s_and_b32 {sCG}, {W}, 1
        s_lshl_b32 {self.sLW}, {W}, 12
        ''')
        vx = self.vx = V.alloc(4); vw = self.vw = V.alloc(4); vd = self.vd = V.alloc(4)
        r8 = V.alloc(); c8 = V.alloc(); g4 = V.alloc(); t = V.alloc(); t2 = V.alloc()
        s(f'''
        v_lshrrev_b32 {r8}, 3, {l}
        v_and_b32 {c8}, 7, {l}
        v_lshrrev_b32 {g4}, 4, {l}
        s_lshl2_add_u32 {sT}, {sRB}, {W}
        s_mul_i32 {sT}, {sT}, {32*896}
        v_mul_u32_u24 {t}, 896, {r8}
        v_add_u32 {t}, {sT}, {t}
        v_xor_b32 {t2}, {c8}, {g4}
        v_lshl_add_u32 {vx[0]}, {t2}, 4, {t}
        v_xor_b32 {t2}, 4, {t2}
        v_lshl_add_u32 {vx[1]}, {t2}, 4, {t}
        v_add_u32 {vx[2]}, {2*(8*896-1024)}, {vx[0]}
        v_add_u32 {vx[3]}, {3*(8*896-1024)}, {vx[1]}
        v_add_u32 {vx[1]}, {8*896-1024}, {vx[1]}
        v_and_b32 {t2}, 1, {g4}
        v_lshlrev_b32 {t2}, 2, {t2}
        v_xor_b32 {t2}, {c8}, {t2}
        s_mul_i32 {sT}, {sCG}, {32*3584}
        s_lshl_b32 {sT2}, {sCB}, 8
        s_add_u32 {sT}, {sT}, {sT2}
        v_mul_u32_u24 {t}, 3584, {r8}
        v_add_u32 {t}, {sT}, {t}
        v_lshl_add_u32 {vw[0]}, {t2}, 4, {t}
        v_add_u32 {vw[1]}, {1*(8*3584-1024)}, {vw[0]}
        v_add_u32 {vw[2]}, {2*(8*3584-1024)}, {vw[0]}
        v_add_u32 {vw[3]}, {3*(8*3584-1024)}, {vw[0]}''')
        s.add(self.early_init())
        s(f'''
        s_mov_b32 s42, {2048*896}
        s_mov_b32 s43, 0x20000
        s_mov_b32 s46, {448*3584}
        s_mov_b32 s47, 0x20000
        s_lshl_b32 {sT}, {sM}, 2
        s_cmp_eq_u32 {sRG}, 0
        ''')
        self.par = V.alloc(6)
        self.sLD = S.alloc(); self.sDS = S.alloc()
        s('@waitlg')
        self.stamp(s, 'karg')
        for n in range(6):
            s(f'global_load_dword {self.par[n]}, {po}, s[{6+2*n}:{7+2*n}]')
        s(f'''s_load_dword {self.sLD}, s[18:19], {sT}
        s_load_dword {self.sDS}, s[20:21], {sT}
        s_cselect_b32 s44, s24, s26
        s_cselect_b32 s45, s25, s27
        s_and_b32 s45, s45, 0xffff
        s_mov_b32 s40, s4
        s_and_b32 s41, s5, 0xffff''')
        V.free(po)
        head = s; s = Stream()
        for c in range(2, 7):
            s.atom(f'''s_add_u32 {sT}, {XO[c-1]}, 128
            s_cmp_ge_u32 {sT}, 896
            s_cselect_b32 {sT2}, 896, 0
            s_sub_u32 {XO[c]}, {sT}, {sT2}''')
        s(f'''s_lshl_b32 {sT}, {sCOL}, 7
        v_mul_u32_u24 {t}, 896, {r8}
        v_add_u32 {t}, {sT}, {t}
        v_lshl_add_u32 {vd[0]}, {t2}, 4, {t}
        v_add_u32 {vd[1]}, {1*(8*896-1024)}, {vd[0]}
        v_add_u32 {vd[2]}, {2*(8*896-1024)}, {vd[0]}
        v_add_u32 {vd[3]}, {3*(8*896-1024)}, {vd[0]}
        ''')
        V.free(r8, c8, g4, t, t2)
        self.srd(s, 48, 's28', 's29', 1792 * 896)
        self.srd(s, 52, 's36', 's37', WSB)
        self.srd(s, 56, 's32', 's33', 2048 * 896)
        for i in list(range(6, 34)): S.free_[i] = True
        self.sDU = S.alloc(7, 1); self.sHU = S.alloc(7, 1); r = S.alloc(); w7 = S.alloc()
        s(f's_and_b32 {sT2}, {sRB}, 3')
        self.rot_code(s, self.opt.get('r2', 'ci'), r)
        s(f's_lshr_b32 {r}, {r}, 7\ns_mul_i32 {w7}, {W}, 7')
        for n in range(7):
            s.atom(f'''s_cmp_ge_u32 {r}, 7
            s_cselect_b32 {sT2}, 7, 0
            s_sub_u32 {r}, {r}, {sT2}''')
            s(f'''s_lshl_b32 {self.sHU[n]}, {r}, 12
            s_add_u32 {sT}, {w7}, {r}
            s_lshr_b32 {sT2}, {sT}, 1
            s_and_b32 {sT}, {sT}, 1
            s_lshl2_add_u32 {sT}, {sT2}, {sT}
            s_mul_i32 {self.sDU[n]}, {sT}, {32*896}
            s_add_u32 {r}, {r}, 1''')
        S.free(r, w7)
        return head, s
    def addrs(self):
        s = Gen.addrs(self)
        for a in s:
            for n, i in enumerate(a):
                if i.text.startswith('s_mul_i32') and i.text.endswith('5120'): a[n] = Ins(i.text[:-4] + str(USTR))
                if i.text.endswith(str(G0.L_U + 1024 - 14*64)): a[n] = Ins(i.text[:-4] + str(L_U + UPAD - 14*64))
        return s
    def u_dma(self):
        s = Stream()
        s.atom(f'''s_mul_i32 {self.sDM}, {self.sRG}, {USTR}
        s_lshl_b32 {self.sT2}, {self.sCG}, 11
        s_add_u32 {self.sDM}, {self.sDM}, {self.sT2}
        s_add_u32 m0, {self.sDM}, {L_U + UPAD}''')
        s.atom(f'''s_lshl2_add_u32 {self.sDM}, {self.sM}, {self.sW}
        s_lshl_b32 {self.sDM}, {self.sDM}, 11
        s_add_u32 {self.sDM}, {self.sDM}, {UOFF}''')
        for q in range(2): s(f'buffer_load_dwordx4 {self.l16}, s[52:55], {self.sDM} offen offset:{1024 * q} sc1 lds', tag='udma')
        return s
    def h_ld(self, p, n, k):
        fr, rt = divmod(k, 2)
        return f'buffer_load_dwordx4 {self.Hf.sub(16*n + 8*fr + 4*rt, 4)}, {self.hv[rt]}, s[52:55], {self.sHU[n]} offen offset:{fr * 1024} sc1'
    def convpost(self):
        s, s2, s3, s4 = Gen3.convpost(self)
        rd = s2[0][0]; ac = rd.ops[1]
        mk = self.S.alloc(2, 2)
        s.insert(0, [Ins(f'v_cmp_ne_u32 {mk}, 0, {self.vg}')])
        s(f'v_cndmask_b32 {ac}, {L_K}, {ac}, {mk}')
        return s, s2, s3, s4
    def kgen_all(self, R, dq):
        s = Stream(); hid = []
        F = [[self.Xr.sub(96 + 64*u, 32), self.Xr.sub(128 + 64*u, 32)] for u in range(2)]
        units = [self.kg_unit(u, R, 8, F[u][0], F[u][1], []) for u in range(2)]
        grp = 0; per = self.iopt('kper', 1); kd = self.iopt('kd', 16 - (len(dq) + per - 1) // per)
        for u in range(2):
            a = units[u][0]; hid = list(units[0][2]) if u else []
            n = 0; dirty = False; cnt = None
            while n < len(a):
                i = a[n][0]
                prev = a[n - 1][0] if n else None
                if i.op == 'v_cvt_pk_bf16_f32' and prev.op != i.op:
                    if hid: s(hid.pop(0))
                    if dirty: s(f's_mov_b32 m0, {self.sSC}'); dirty = False
                s.append(a[n])
                nxt = a[n + 1][0] if n + 1 < len(a) else None
                if i.kind == 'ds' and (nxt is None or nxt.kind != 'ds'):
                    if grp >= kd and dq:
                        h, x = dq.pop(0); s.append([Ins(y.text) for y in h]); s.append(x); dirty = True
                        cnt = 0 if per > 1 else None
                    grp += 1
                elif cnt is not None:
                    cnt += 1
                    if cnt == self.iopt('kgap', 8):
                        if dq: h, x = dq.pop(0); s.append([Ins(y.text) for y in h]); s.append(x)
                        cnt = None
                n += 1
            if dirty and u == 0: s(f's_mov_b32 m0, {self.sSC}')
            if u == 0: self.stamp(s, 'k1a')
        return s, units[1][2]
    def G(self, p, kk, n=0): return 8 + 4 * (p * 28 + kk) + n
    def gemm1(self, sc, mf0, k1, k2):
        sy = self.sync_chunks()
        for x in mf0: sc.mfma(x)
        nw = max(n for n, a in enumerate(k1) if a[0].kind == 'ds')
        sc.at(0, k1[:2])
        t = Stream(); t.add(k1[2:nw + 1]); t.add(k1[nw + 9:nw + 10])
        t('@wait LG it0 it1\ns_barrier')
        for x in self.g1_reads(0): t.add(x)
        t.add(k2)
        for x in self.g1_reads(1): t.add(x)
        t.add(k1[nw + 10:])
        t('@wait r0')
        t[nw - 1:nw - 1] = k1[nw + 1:nw + 9]
        sc.tail(7, t)
        for K in range(56):
            p, kk = divmod(K, 28)
            buf = self.Wf[K % 3]
            rd = self.g1_reads(K + 2) if K + 2 < 56 else [Stream(), Stream()]
            issync = K % 4 == 2 and ((K + 2) // 4 in sy or K == 54)
            for n in range(4):
                rt, mat = divmod(n, 2); a = self.acc[p][n]
                g = sc.mfma(f'v_mfma_f32_32x32x16_bf16 {a}, {buf.sub(4*mat, 4)}, {self.Xr.sub(8*kk + 4*rt, 4)}, {a if kk else 0}')
                if n == 0 and issync:
                    its = ['udma'] if K == 54 else [f'it{i}' for C in sy[(K + 2) // 4] for i in self.citems(C)]
                    sc.here()('@wait LG ' + ' '.join(its) + '\ns_barrier')
                if n % 2 == 0: sc.here().add(rd[n // 2])
            if K + 1 < 56 and not issync: sc.tail(g, Stream()(f'@wait r{K + 1}'))
    def plan_dma(self, c0):
        I = self.iopt; G = self.G; sy = self.sync_chunks()
        self.drs = {n: G(1, I('dr0', 18)) + I('drs', 10) // 2 * 2 * n for n in range(7)}
        bars = sorted(sy) + [14]
        def freed(it):
            if it >= 28: return 10**6
            if it >= 21: return self.drs[it - 21] + 9
            C = it // 2 if it < 14 else it - 7
            return self.bar_gap(min(b for b in bars if b > C)) + 1
        def need(it):
            if it < 21:
                C = it // 2 if it < 14 else it - 7
                b = max(x for x in sy if x <= C)
                return self.bar_gap(b) if b else -1
            return self.drs[it - 21] if it < 28 else 10**6
        free = {k: 0 for k in range(8)}; self.kbar = I('kbar', 2); free[0] = self.bar_gap(self.kbar) + 1
        self.slots = {}; self.iss = {}
        order = [1, 0, 3, 2, 4, 5, 6] + list(range(7, 35))
        for it in order:
            k = min(free, key=lambda k: (free[k], k == 0))
            self.slots[it] = k; self.iss[it] = free[k]; free[k] = freed(it)
        self.need = need
        return order

    def build(self):
        V = self.V; A = self.A; S = self.S; o = self.opt; I = self.iopt; F = lambda n, d: float(o.get(n, d))
        for k in COST: COST[k] = F('c_' + k, COST[k])
        G = self.G; c0 = G(1, 27, 3) + 1
        order = self.plan_dma(c0); G3.slot = self.slot
        m = Stream()
        m.add(self.entry())
        head, tail = self.prologue(); m.add(head)
        tail.add(self.addrs()); tail.add(self.misc_addrs())
        ks1, ks2 = self.kg_setup(); tail.add(ks1)
        self.sCnt = S.alloc()
        self.Xr = A.alloc(224, 4); AW = A.alloc(32, 4); self.Wf = [AW.sub(8*i, 8) for i in range(3)]
        big = V.alloc(112, 4); blk = V.alloc(64, 4)
        kr = sub_regs(big)
        R = [kr.alloc(6), kr.alloc(16), kr.alloc(8), kr.alloc(2), kr.alloc(2), kr.alloc(2), kr.alloc(2), kr.alloc(16), kr.alloc(18), None]
        allq = []
        for it in order:
            x = self.dma(it)
            for k in range(4): allq.append((it, k, x[:-4], x[len(x) - 4 + k]))
        nd0 = I('nd0', 0); ndp = I('ndp', 10); nk = I('nk', 6)
        d = Stream()
        for it, k, h, x in allq[:nd0]:
            if k == 0: d.add(h)
            d.append(x)
        m.add(sprinkle(tail, d, I('ev00', 0), I('ev0', 12)))
        if o.get('clr') == 'pro': m.add(self.clears())
        self.stamp(m, 'pro')
        m.add(ks2)
        dp = Stream()
        for j, (it, k, h, x) in enumerate(allq[nd0:nd0 + ndp]):
            if k == 0 or j == 0: dp.append([Ins(y.text) for y in h[-1]])
            dp.append(x)
        nd0 += ndp
        dq = [(h[-1], x) for it, k, h, x in allq[nd0:nd0 + nk]]
        kg, mf1 = self.kgen_all(R, dq); assert not dq
        if ndp:
            fc = min(n for n, a in enumerate(kg) if a[0].kind == 'ds')
            hd = sprinkle(Stream(kg[:fc - 1]), dp, I('pv0', 6), I('pv', 5)); hd(f's_mov_b32 m0, {self.sSC}')
            kg = Stream(hd + kg[fc - 1:])
        m.add(kg)
        V.free(self.pfreg, self.par, self.dt, self.af)
        self.stamp(m, 'kgen')
        self.acc = [[blk.sub(16*i, 16) for i in range(4)], [big.sub(16*i, 16) for i in range(4)]]
        sc = Sched(I('budget', 5))
        self.V = sub_regs(big); k1, k2, k3 = self.kexch(); self.V = V
        self.gemm1(sc, mf1, k1, k2)
        self.Z = self.acc[0]; self.D = self.Xr.sub(0, 112); self.Hf = big
        self.cF = [self.Xr.sub(160, 32), AW]
        assert c0 == sc.n()
        fr0 = self.conv(sc); a0 = sc.n()
        sc.even(fr0, G(1, 26, 0), per=3)
        self.acc2 = [self.kacc] + [self.Xr.sub(112 + 16*i, 16) for i in range(3)]
        nl = I('nlast', 2); b0 = a0 + 56
        use = lambda p, n: (a0 + 8*n) if p == 0 else (b0 + 8*min(n, 7 - nl))
        for n in range(7):
            for fr in range(2):
                for sl in range(4): self.g2(sc, 0, n, fr, sl)
        for n in range(7 - nl):
            for fr in range(2):
                for sl in range(4): self.g2(sc, 1, n, fr, sl)
        done = {}
        for sl in (1, 2, 3, 0):
            for n in range(7 - nl, 7):
                for fr in range(2): done[sl] = self.g2(sc, 1, n, fr, sl)
        e1 = sc.n()
        tu = G(1, I('tu', 12))
        sc.mem(self.dbg_load(1), tu)
        gu = tu + I('tu2', 20)
        pc = Stream(); self.poll_check(pc, self.dbgld, self.fl); sc.at(gu - 1, pc[:1]); sc.at(gu, pc[1:])
        e0end = G(1, I('e0end', 19))
        gf0 = e0end + I('f0', 22); assert gf0 > gu
        sc.mem(self.setflags(0), gf0)
        h0s = Stream()
        g = I('dstart', 12); udone = False; rest = allq[nd0 + nk:]; est = I('est', 20)
        for j, (it, k, h, x) in enumerate(rest):
            d = Stream()
            if k == 0 or j == 0:
                g = max(g, self.iss[it])
                if not udone and g > gu:
                    wh, g = sc.mem(self.u_dma(), g, step=2); udone = True; assert wh[-1] < self.bar_gap(14) - 12
                prev = [y for y in order[:order.index(it)] if self.slots[y] == self.slots[it]]
                if prev and prev[-1] >= 21: d(f'@waitlg dr{prev[-1]}')
                d.add(h if k == 0 else h[-1:])
            d.append(x)
            st = F('s0', 2) if it < 14 else (F('s1', 2.3) if it < 28 else F('s2', 2.3))
            if c0 <= g < c0 + est: st = min(st, 2)
            hd = d[:-1]
            wh, g = sc.mem(d[-1:], g, step=st)
            sc.tail(wh[0] - 1, hd) if wh[0] > 0 else None
            assert wh[-1] < self.need(it), (it, wh, self.need(it))
            if o.get('occ') and k == 3: print(it, 'slot', self.slots[it], wh, 'need', self.need(it))
        gdma = g
        for n in range(7):
            assert self.drs[n] >= G(1, 2*n + 2) and self.drs[n] + 10 < use(0, n)
            sc.even(self.d_reads(0, n, self.D.sub(16*n, 16)), self.drs[n], per=2)
        hg = {}; g = max(gdma, a0 - I('h0', 32))
        for p in range(2):
            if p: g = max(g, b0 - I('h1', 28))
            for n in range(7):
                if p: g = max(g, a0 + 8*n + 7)
                x = Stream()
                if p and n == 0:
                    for rt in range(2): x(f'v_add_u32 {self.hv[rt]}, {28*4096}, {self.hv[rt]}')
                for k in range(4): x(self.h_ld(p, n, k), tag=f'h{p}{n}')
                wh, g = sc.mem(x, g, step=F('hstep', 2))
                for k in range(4): hg[p, n, k] = wh[k]
                assert wh[3] < use(p, n) - 1 + (2 * (n - 7 + nl) if (p and n >= 7 - nl) else 0), (p, n, wh, use(p, n))
        kv = Stream([a for a in k3 if a[0].kind != 'ds']); kw = Stream([a for a in k3 if a[0].kind == 'ds'])
        g = sc.place(kv, 8, 40, dense=True, budget=6)
        g = max(g, I('kw', 0))
        for j, a in enumerate(kw): sc.gaps[g + 1 + j].insert(0, a)
        assert g + 4 < self.bar_gap(self.kbar)
        sc.at(G(0, 27, 3), self.st('p0'))
        self.V = sub2 = sub_regs(big, 64, 112)
        e0 = Stream(); parts = self.epi(0, 'woven')
        for n, (kind, x) in enumerate(parts):
            e0.add(x); sb = I('sb', 4)
            if n % (2*sb) == 2*sb - 1:
                if n // (2*sb) == 0 and o.get('clr') != 'pro': e0.add(self.clears())
                for q in range(n // 2 - sb + 1, n // 2 + 1): e0(self.hst(0, q), tag='hst0')
        ge = sc.place(e0, G(1, 0, 1), e0end, dense=True)
        sc.at(ge, self.st('e0'))
        sub2.free(self.et, self.eo); self.V = V
        sc.at(G(1, 27, 3), self.st('p1'))
        V.free(self.vx, self.vw, self.aw, *self.ax)
        pld = f'buffer_load_dword {self.fl}, {self.fp}, s[52:55], 0 offen sc1'
        self.V = sub2; mode = o.get('epi', 'pk'); parts = self.epi(1, mode); self.V = V
        g = c0 - 1; per = len(parts) // 2
        for n, (kind, x) in enumerate(parts):
            if n == len(parts) - 1: x(pld)
            if n % per == per - 1: x(self.hst(1, 2 * (n // per)), tag='hst1'); x(self.hst(1, 2 * (n // per) + 1), tag='hst1')
            if kind == 'pk':
                one = Stream(); one.append([i for a in x for i in a]); sc.at(g, one)
                if n + 1 < len(parts) and parts[n + 1][0] != 'pk': g += 1
            else: g = sc.place(x, g, a0, dense=True, budget=I('eb', 10))
        sc.at(g, self.st('epi1'))
        assert g < hg[0, 0, 0] - 2, (g, hg[0, 0, 0])
        gf1 = g + I('f1', 24); gf1 += gf1 & 1
        sc.at(gf1, self.setflags(1))
        pc = Stream(); self.poll_check(pc, pld, self.fl)
        sc.at(hg[0, 0, 0] - 2, pc[:1]); sc.at(hg[0, 0, 0] - 1, pc[1:])
        sc.at(a0 - 1, self.st('conv'))
        pld = f'buffer_load_dword {self.fl}, {self.fh}, s[52:55], 0 offen sc1'
        gp = hg[1, 0, 0] - 1 - I('p3', 20); gp -= gp & 1
        sc.gaps[gp](pld)
        pc = Stream(); self.poll_check(pc, pld, self.fl)
        sc.at(hg[1, 0, 0] - 2, pc[:1]); sc.at(hg[1, 0, 0] - 1, pc[1:])
        sc.at(hg[1, 0, 0] + 1, self.g_load())
        for n in range(7):
            lo = max(a0 + 8*n + 8, use(1, n) - I('dl', 14) - (8 * (6 - n) if n >= 7 - nl else 0))
            ge_ = sc.even(self.d_reads(1, n, self.D.sub(16*n, 16)), lo, per=2)
            assert ge_ < use(1, n) - 1
        for n in range(7):
            sc.tail(use(0, n) - 1, Stream()(f'@wait dr{21 + n} h0{n}'))
            if n < 7 - nl: sc.tail(use(1, n) - 1, Stream()(f'@wait dr{28 + n} h1{n}'))
            else: sc.tail(use(1, n) - 1 + 2 * (n - 7 + nl), Stream()(f'@wait dr{28 + n} h1{n}'))
        cp1, cp2, cp3, cp4 = self.convpost()
        g = sc.place(cp1, a0 + 2, b0, dense=True, budget=I('cb', 6))
        sc.gaps[g]('@waitlg carry\ns_barrier')
        g = sc.place(cp2, g, b0, dense=True); g = sc.place(cp3, g + 1, b0, dense=True)
        g = max(g, a0 + I('as', 0)); g += g & 1
        sc.at(g, cp4[:1]); g += 2; sc.at(g, cp4[1:])
        sc.at(g, self.st('ast'))
        sc.at(b0 - 1, self.st('g2a'))
        self.V = sub3 = sub_regs(blk)
        self.ga = sub3.alloc(16, 2); self.ab = sub3.alloc(8, 2)
        pre, wr, fin1, fin2 = self.final(); pre.add(self.a_addr()); self.V = V
        gl = e1 - I('al', 18)
        sc.place(pre, g + 2, min(gl, done[1]))
        sc.mem(Stream()(self.a_ld()), gl)
        for k in (1, 2, 3): sc.place(wr[k], done[k] + 1, min(e1, done[k] + 1 + 2*nl))
        ap1, ap2 = self.a_prep()
        for g in range(7, sc.n(), 16): sc.at(g, self.st(f'g{g + 1}'))
        m.add(self.dropper(sc.out()))
        self.stamp(m, 'g2b')
        m.add(fin1); m.add(ap1); m.add(ap2); m.add(fin2)
        self.stamp(m, 'end'); self.stamp(m, 'e', real=True)
        self.stamp_out(m)
        m('s_endpgm')
        m.add(self.cold)
        m.add(self.helper())
        m('L_end:\ns_endpgm')
        if o.get('occ'): print(' '.join(str(int(sc.occ(g))) for g in range(sc.n()))); print('vgpr hi', V.hi, 'gdma', gdma, 'ge', ge, 'c0', c0, 'a0', a0, hg[0, 0, 0], hg[1, 0, 0], hg[1, 6, 3])
        k = K(KN + '_kernel', vgpr=256, agpr=256)
        k.lines = finalize2(m, not o.get('noalign'), 'v255' if o.get('trace') else None)
        txt = build([k], [(KN + '_kernel', 256, 256, 163840)])
        if o.get('trace'): txt = '; trace: ' + ' '.join(finalize2.names) + '\n' + txt
        return txt

if __name__ == '__main__':
    opt = dict(a.split('=') if '=' in a else (a, 1) for a in sys.argv[2:])
    open(sys.argv[1], 'w').write(Gen5(opt).build())
```

```python
import sys, struct
from fw import *
from asmlib import K, build

HOFF = 0; UOFF = 8 << 20; AOFF = 10 << 20; GOFF = 12 << 20; FOFF = 13 << 20; TOFF = 16 << 20; WSB = 32 << 20
FH0 = FOFF; FA = FOFF + 896 * 128; FH1 = FOFF + 1792 * 128; FG = FOFF + 2688 * 128
L_K = 0; KSTR = 4160
L_U = 8320; USTR = 5056; UPAD = 960
L_C = 18432
L_AB = 22720
L_X = 24576
L_S = 14336; SSTR = 8704
L_R = 32768
LOG2E = 1.4426950408889634
SPIN = 30000
MF = 'v_mfma_f32_32x32x16_bf16'
def f2h(x): return hex(struct.unpack('<I', struct.pack('<f', x))[0])
def win(addr):
    w = (addr - L_R) // 65536
    return w, addr - L_R - w * 65536
def sub_regs(reg, lo=0, hi=None):
    r = Regs(reg.t, 256, 256)
    for i in range(reg.b + lo, reg.b + (reg.n if hi is None else hi)): r.free_[i] = True
    return r
DEF = dict(r1='ci', r2='c', hord='AXWUD', bar2='7,9,11')

class Gen8:
    def __init__(self, opt):
        self.opt = dict(DEF); self.opt.update(opt)
        self.V = Regs('v', 256, 1); self.A = Regs('a', 256); self.S = Regs('s', 94, 60)
        self.cold = Stream(); self.nlab = 0; self.nodo = 0
    def I(self, n, d): return int(self.opt.get(n, d))
    def F(self, n, d): return float(self.opt.get(n, d))
    def lab(self, n):
        self.nlab += 1; return f'L_{n}_{self.nlab}'
    def st(self, name):
        s = Stream(); t = self.opt.get('trace')
        if t and (t == 1 or name in ('st', 'end') or name in t.split(',')): s(f'@tr {name}')
        return s
    def real(self, s, r):
        if self.opt.get('trace'): s(f's_memrealtime s[{r}:{r + 1}]')
    def stamp_out(self, s):
        if self.opt.get('trace'): s(f'''@trend
        @waitall
        v_writelane_b32 v255, s96, 62
        v_writelane_b32 v255, s4, 63
        s_lshl2_add_u32 s3, s2, {self.sW}
        s_lshl_b32 s3, s3, 8
        s_add_u32 s3, s3, {TOFF}
        v_lshlrev_b32 v254, 2, {self.lane}
        buffer_store_dword v255, v254, s[52:55], s3 offen''')
    def srd(self, s, d, lo, hi, n):
        s(f'''s_mov_b32 s{d}, {lo}
        s_and_b32 s{d+1}, {hi}, 0xffff
        s_mov_b32 s{d+2}, {n}
        s_mov_b32 s{d+3}, 0x20000''')
    def check(self, test, reload):
        s = Stream(); slow = self.lab('slow'); ok = self.lab('ok'); lp = self.lab('lp')
        s(test); s.atom(f's_cbranch_vccnz {slow}\n{ok}:'); s[-2:] = [s[-2] + s[-1]]
        self.nodo += 1
        odo = f'v_writelane_b32 v255, s3, {55 + self.nodo}' if self.opt.get('trace') else ''
        self.cold(f'''@forget
        {slow}:
        s_mov_b32 s3, 0
        {lp}:
        s_add_u32 s3, s3, 1
        s_cmp_gt_u32 s3, {SPIN}
        s_cbranch_scc1 {ok}
        {odo}
        {reload}
        s_waitcnt vmcnt(0)
        {test}
        s_cbranch_vccnz {lp}
        s_branch {ok}''')
        return s
    def xpose(self, A, B, T):
        s = Stream(); D = 'row_mask:0xf bank_mask:0xf'
        def stage(A, B, T, mask, perm):
            s.atom(f's_mov_b64 vcc, {mask}\n' + '\n'.join(f'v_cndmask_b32_dpp {T[i]}, {B[i]}, {A[i]}, vcc quad_perm:{perm} {D}' for i in range(4))
                   + '\ns_not_b64 vcc, vcc\n' + '\n'.join(f'v_cndmask_b32_dpp {B[i]}, {A[i]}, {B[i]}, vcc quad_perm:{perm} {D}' for i in range(4)))
        stage(A, B, T, self.sMK.sub(0, 2), '[1,0,3,2]')
        for i in range(4): s(f'v_permlane32_swap_b32 {T[i]}, {B[i]}')
        stage(T, B, A, self.sMK.sub(2, 2), '[2,3,0,1]')
        return s, A, B
    def poll(self, ld):
        return Stream()(ld), self.check(f'v_cmp_ne_u32 vcc, -1, {self.fl}', ld)

    def entry(self):
        s = Stream(); V = self.V
        self.real(s, 96); s.add(self.st('st'))
        if self.opt.get('trace'): V.free_[255] = False; s('v_mov_b32 v255, 0')
        self.lane = V.alloc(); self.sW = self.S.alloc(); t = V.alloc(); self.fl = V.alloc()
        s(f'''
        s_load_dwordx16 s[4:19], s[0:1], 0
        s_load_dwordx16 s[20:35], s[0:1], 64
        s_load_dwordx2 s[36:37], s[0:1], 128
        s_cmp_ge_u32 s2, 256
        s_cbranch_scc1 L_end
        s_getpc_b64 s[38:39]
        L_pc:
        s_lshr_b32 s3, s2, 3
        v_lshrrev_b32 {t}, 4, v0
        v_lshl_add_u32 {t}, {t}, 5, s3
        v_lshlrev_b32 {t}, 7, {t}
        v_min_u32 {t}, L_end-L_pc, {t}
        global_load_dword {self.fl}, {t}, s[38:39]
        v_lshrrev_b32 {t}, 6, v0
        v_and_b32 {self.lane}, 63, v0
        v_readfirstlane_b32 {self.sW}, {t}
        s_cmp_lt_u32 s2, 32
        s_cbranch_scc1 L_helper''')
        V.free(t)
        return s
    def rot(self, s, mode, dst, i):
        if mode == 'ci': s(f's_lshl1_add_u32 {dst}, {i}, {self.sCOL}')
        elif mode == 'c': s(f's_mov_b32 {dst}, {self.sCOL}')
        elif mode == 'cx': s(f's_and_b32 {dst}, {self.sM}, 6\ns_add_u32 {dst}, {dst}, {self.sCOL}')
        else: s(f's_mov_b32 {dst}, 0')
    def setup(self, T):
        V = self.V; S = self.S; l = self.lane; W = self.sW; s = Stream()
        for n in 'sM sRB sCB sCOL sR64 sRG sCG sT sT2 sLW sDM sLD sDS sSC sH sH1'.split(): setattr(self, n, S.alloc())
        sM, sRB, sCB, sCOL, sR64, sRG, sCG, sT, sT2 = self.sM, self.sRB, self.sCB, self.sCOL, self.sR64, self.sRG, self.sCG, self.sT, self.sT2
        XO = self.sXO = S.alloc(7, 1)
        vx = self.vx = V.alloc(4); vw = self.vw = V.alloc(4); vd = self.vd = V.alloc(4); self.par = V.alloc(6)
        po, r8, c8, g4, t, t2, t3, i, hl, pc, sw = [T.alloc() for _ in range(11)]
        s(f'''
        s_sub_u32 {sM}, s2, 32
        s_lshl_b32 {sT}, {sM}, 10
        v_lshl_add_u32 {po}, v0, 2, {sT}
        s_lshl_b32 {self.sDM}, {sM}, 2
        s_lshr_b32 {sT}, {sM}, 3
        s_and_b32 {sT2}, {sM}, 6
        s_lshl_b32 {sRB}, {sT2}, 1
        s_and_b32 {sT2}, {sT}, 3
        s_add_u32 {sRB}, {sRB}, {sT2}
        s_lshr_b32 {sCOL}, {sT}, 2
        s_and_b32 {sR64}, {sM}, 7
        s_lshl2_add_u32 {sR64}, {sR64}, {sT2}''')
        self.rot(s, self.opt['r1'], sT, sT2)
        s(f's_lshl_b32 {sT}, {sT}, 7')
        def xo(s, c):
            s.atom((f's_add_u32 {sT}, {XO[c-1]}, 128\n' if c else '') + f'''s_cmp_ge_u32 {sT}, 896
            s_cselect_b32 {sT2}, 896, 0
            s_sub_u32 {XO[c]}, {sT}, {sT2}''')
        xo(s, 0); xo(s, 1)
        s(f'''
        s_and_b32 {sT2}, {sM}, 1
        s_mul_i32 {sCB}, {sT2}, 7
        s_add_u32 {sCB}, {sCB}, {sCOL}
        s_lshr_b32 {sRG}, {W}, 1
        s_and_b32 {sCG}, {W}, 1
        s_lshl_b32 {self.sLW}, {W}, 12
        v_lshrrev_b32 {r8}, 3, {l}
        v_and_b32 {c8}, 7, {l}
        v_lshrrev_b32 {g4}, 4, {l}
        s_lshl2_add_u32 {sT}, {sRB}, {W}
        s_mul_i32 {sT}, {sT}, {32*896}
        v_mul_u32_u24 {t}, 896, {r8}
        v_add_u32 {t}, {sT}, {t}
        v_xor_b32 {t2}, {c8}, {g4}
        v_lshl_add_u32 {vx[0]}, {t2}, 4, {t}
        v_xor_b32 {t2}, 4, {t2}
        v_lshl_add_u32 {vx[1]}, {t2}, 4, {t}
        v_add_u32 {vx[2]}, {2*(8*896-1024)}, {vx[0]}
        v_add_u32 {vx[3]}, {3*(8*896-1024)}, {vx[1]}
        v_add_u32 {vx[1]}, {8*896-1024}, {vx[1]}
        v_and_b32 {g4}, 1, {g4}
        v_lshlrev_b32 {sw}, 2, {g4}
        v_xor_b32 {sw}, {c8}, {sw}
        s_mul_i32 {sT}, {sCG}, {32*3584}
        s_lshl_b32 {sT2}, {sCB}, 7
        s_add_u32 {sT}, {sT}, {sT2}
        v_mul_u32_u24 {t}, 3584, {r8}
        v_add_u32 {t}, {sT}, {t}
        v_lshl_add_u32 {vw[0]}, {sw}, 4, {t}
        v_add_u32 {vw[1]}, {1*(8*3584-1024)}, {vw[0]}
        v_add_u32 {vw[2]}, {2*(8*3584-1024)}, {vw[0]}
        v_add_u32 {vw[3]}, {3*(8*3584-1024)}, {vw[0]}
        s_mov_b32 s42, {2048*896}
        s_mov_b32 s43, 0x20000
        s_mov_b32 s46, {448*3584}
        s_mov_b32 s47, 0x20000
''')
        pl = Stream()('@waitlg'); pl.add(self.st('karg'))
        for n in range(6): pl(f'global_load_dword {self.par[n]}, {po}, s[{6+2*n}:{7+2*n}]')
        pl(f'''s_load_dword {self.sLD}, s[18:19], {self.sDM}
        s_load_dword {self.sDS}, s[20:21], {self.sDM}''')
        pe = self.I('pe', 4); s[pe:pe] = pl
        s(f'''s_cmp_eq_u32 {sRG}, 0
        s_cselect_b32 s44, s24, s26
        s_cselect_b32 s45, s25, s27
        s_and_b32 s45, s45, 0xffff
        s_mov_b32 s40, s4
        s_and_b32 s41, s5, 0xffff''')
        head = s
        s = Stream()
        self.l16 = V.alloc(); self.af = V.alloc(); self.dt = V.alloc(2); self.kacc = V.alloc(16, 4)
        ax = self.ax = [V.alloc(4), V.alloc(4)]; aw = self.aw = V.alloc(2); ad = self.ad = [V.alloc(2), V.alloc(2)]
        self.av = V.alloc(); self.ff = V.alloc(4, 2)
        s(f'''
        v_mov_b32 {t3}, 0
        v_min_u32 {t}, 239, v0
        v_lshlrev_b32 {t}, 2, {t}
        v_and_b32 {i}, 15, {l}
        v_lshlrev_b32 {t2}, 2, {i}
        ds_write_b32 {t}, {t3} offset:{L_U}
        ds_write_b32 {t}, {t3} offset:{L_U + USTR}
        ds_write_b32 {t2}, {t3} offset:{L_K}
        ds_write_b32 {t2}, {t3} offset:{L_K + KSTR}
''')
        for c in range(2, 7): xo(s, c)
        s(f'''
        v_lshlrev_b32 {self.l16}, 4, {l}
        v_lshrrev_b32 {hl}, 5, {l}
        s_mul_i32 {self.sSC}, {W}, {SSTR}
        s_add_u32 {self.sSC}, {self.sSC}, {L_S}
        v_and_b32 {t3}, 31, {l}
        v_mul_u32_u24 {t}, 272, {t3}
        v_lshl_add_u32 {t}, {hl}, 4, {t}
        v_add_u32 {self.af}, {self.sSC}, {t}
        s_lshl_b32 {sT}, {sRG}, 13
        s_add_u32 {sT}, {sT}, {L_R}
        v_lshl_add_u32 {t}, {t3}, 7, {sT}
        v_bfe_u32 {t2}, {l}, 1, 3
        v_xor_b32 {t2}, {t2}, {hl}
        v_lshl_add_u32 {ax[0][0]}, {t2}, 4, {t}
        v_xor_b32 {ax[0][1]}, 32, {ax[0][0]}
        v_xor_b32 {ax[0][2]}, 64, {ax[0][0]}
        v_xor_b32 {ax[0][3]}, 96, {ax[0][0]}''')
        for k in range(4): s(f'v_add_u32 {ax[1][k]}, 0x10000, {ax[0][k]}')
        s(f'''
        v_lshrrev_b32 {t3}, 3, {i}
        v_xor_b32 {t3}, {sCG}, {t3}
        v_lshlrev_b32 {t3}, 6, {t3}
        v_lshrrev_b32 {c8}, 2, {i}
        v_lshl_add_u32 {t3}, {c8}, 7, {t3}
        v_add_u32 {t3}, {L_R}, {t3}
        v_lshl_add_u32 {t}, {hl}, 10, {t3}
        v_lshl_add_u32 {t}, {g4}, 5, {t}
        v_and_b32 {po}, 3, {i}
        v_lshl_add_u32 {aw[0]}, {po}, 3, {t}
        v_add_u32 {aw[1]}, 0x10000, {aw[0]}''')
        self.srd(s, 52, 's36', 's37', WSB)
        s(f'''s_lshl1_add_u32 {sT}, {sM}, {sRG}
        s_lshl_b32 {sT}, {sT}, 12
        s_lshl_b32 {sT2}, {sCG}, 9
        s_add_u32 {sT}, {sT}, {sT2}
        s_add_u32 {sT}, {sT}, {AOFF}
        v_lshl_add_u32 {self.av}, {c8}, 10, {sT}
        v_lshl_add_u32 {self.av}, {g4}, 8, {self.av}
        v_lshl_add_u32 {self.av}, {hl}, {6 if self.I('xa', 1) else 7}, {self.av}
        v_lshl_add_u32 {self.av}, {po}, 4, {self.av}''')
        for k in range(4): s(f'v_mov_b32 {self.ff[k]}, -1')
        if self.opt.get('mt'):
            self.tv = T.alloc(); tb = self.tb = S.alloc(2, 2)
            s(f'''v_min_u32 {t}, 27, {l}
            v_mul_u32_u24 {t2}, 9363, {t}
            v_lshrrev_b32 {t2}, 16, {t2}
            v_mul_u32_u24 {t2}, {3584 - 7*128}, {t2}
            v_lshlrev_b32 {t}, 7, {t}
            s_lshr_b32 {sT}, {sM}, 1
            s_mul_i32 {sT}, {sT}, {4*3584}
            s_and_b32 {sT2}, {sM}, 1
            s_mul_i32 {sT2}, {sT2}, 896
            s_add_u32 {sT}, {sT}, {sT2}
            s_add_u32 {sT}, {sT}, 1792
            s_lshl1_add_u32 {sT2}, {sM}, {sCG}
            s_mul_i32 {sT2}, {sT2}, {28*128}''')
            s.atom(f'''s_cmp_eq_u32 {sCG}, 0
            s_cselect_b64 {tb}, s[24:25], s[26:27]''')
            s.atom(f'''s_cmp_eq_u32 {sRG}, 0
            s_cselect_b64 {tb}, {tb}, s[28:29]
            s_cselect_b32 {sT}, {sT}, {sT2}
            s_cselect_b32 {sT2}, -1, 0''')
            s(f'''v_and_b32 {t2}, {sT2}, {t2}
            v_add3_u32 {self.tv}, {t}, {t2}, {sT}''')
        early = s
        s = Stream(); sA = S.alloc(); sB = S.alloc(); mk = S.alloc(2, 2)
        self.srd(s, 48, 's28', 's29', 1792 * 896)
        self.srd(s, 56, 's32', 's33', 2048 * 896)
        for k in range(6, 24): S.free_[k] = True
        self.sDU = S.alloc(7, 1); self.sHU = S.alloc(7, 1); r = S.alloc(); w7 = S.alloc()
        for n in 'ak au vg fa fs fp fh row'.split(): setattr(self, n, V.alloc())
        self.c1 = V.alloc(2); self.c0 = V.alloc(2); self.hv = V.alloc(2)
        c0 = -2 * 0.7978845608028654 * LOG2E
        s(f'''
        v_mov_b32 {self.c1[0]}, {f2h(c0 * 0.044715)}
        v_mov_b32 {self.c1[1]}, {f2h(c0 * 0.044715)}
        v_mov_b32 {self.c0[0]}, {f2h(c0)}
        v_mov_b32 {self.c0[1]}, {f2h(c0)}
        s_lshl_b32 {sA}, {sCOL}, 7
        v_mul_u32_u24 {t}, 896, {r8}
        v_add_u32 {t}, {sA}, {t}
        v_lshl_add_u32 {vd[0]}, {sw}, 4, {t}
        v_add_u32 {vd[1]}, {1*(8*896-1024)}, {vd[0]}
        v_add_u32 {vd[2]}, {2*(8*896-1024)}, {vd[0]}
        v_add_u32 {vd[3]}, {3*(8*896-1024)}, {vd[0]}
        s_and_b32 {sB}, {sRB}, 3''')
        self.rot(s, self.opt['r2'], r, sB)
        s(f's_mul_i32 {w7}, {W}, 7')
        for n in range(7):
            s.atom(f'''s_cmp_ge_u32 {r}, 7
            s_cselect_b32 {sB}, 7, 0''')
            s(f'''s_sub_u32 {r}, {r}, {sB}
            s_lshl_b32 {self.sHU[n]}, {r}, 12
            s_add_u32 {sA}, {w7}, {r}
            s_mul_i32 {self.sDU[n]}, {sA}, {32*896}
            s_add_u32 {r}, {r}, 1''')
        s(f'''
        ; permuted column bytes pc = (i&1)*32 + (G&1)*16 + ((i>>1)&1)*8
        v_and_b32 {pc}, 1, {i}
        v_lshlrev_b32 {pc}, 5, {pc}
        v_lshl_add_u32 {pc}, {g4}, 4, {pc}
        v_bfe_u32 {t2}, {i}, 1, 1
        v_lshl_add_u32 {pc}, {t2}, 3, {pc}
        v_add_u32 {t3}, {t3}, {pc}
        v_lshl_add_u32 {t3}, {hl}, 9, {t3}
        v_add_u32 {ad[0][0]}, {self.sLW}, {t3}
        v_xor_b32 {ad[1][0]}, 64, {ad[0][0]}
        v_add_u32 {ad[0][1]}, 0x10000, {ad[0][0]}
        v_add_u32 {ad[1][1]}, 0x10000, {ad[1][0]}
        s_mul_i32 {sA}, {sRG}, {KSTR}
        s_add_u32 {sA}, {sA}, {L_K + 32}
        v_lshl_add_u32 {t}, {hl}, 6, {pc}
        v_lshlrev_b32 {t2}, 3, {c8}
        v_sub_u32 {t}, {t}, {t2}
        v_add_u32 {self.ak}, {sA}, {t}
        s_mul_i32 {sA}, {sRG}, {USTR}
        s_lshl_b32 {sB}, {sCG}, 9
        s_add_u32 {sA}, {sA}, {sB}
        s_add_u32 {sA}, {sA}, {L_U + UPAD - 14*64}
        v_lshl_add_u32 {t}, {g4}, 2, {po}
        v_sub_u32 {t2}, {t}, {hl}
        v_lshl_add_u32 {t2}, {t2}, 6, {sA}
        v_lshl_add_u32 {self.au}, {c8}, 4, {t2}
        v_lshl_add_u32 {t}, {t}, 1, {hl}
        v_lshl_add_u32 {t}, {c8}, 5, {t}
        s_lshl_b32 {sA}, {sCG}, 4
        v_add_u32 {self.vg}, {sA}, {t}
        ; h unit of this wave and its flags
        s_lshl1_add_u32 {sA}, {sRB}, {sRG}
        s_mul_i32 {sB}, {sA}, 14
        s_add_u32 {sB}, {sB}, {sCB}
        s_lshl1_add_u32 {sB}, {sB}, {sCG}
        s_mul_i32 {sA}, {sA}, 28
        s_add_u32 {self.sH}, {sA}, {sB}
        s_lshl_b32 {self.sH}, {self.sH}, 12
        s_add_u32 {self.sH1}, {self.sH}, {28*4096}
        s_lshl_b32 {sB}, {sB}, 7
        s_add_u32 {sB}, {sB}, {FH0}
        v_mov_b32 {self.fs}, {sB}
        s_lshl2_add_u32 {sA}, {sM}, {W}
        s_lshl_b32 {sA}, {sA}, 7
        s_add_u32 {sA}, {sA}, {FA}
        v_cmp_lt_u32 {mk}, FLN, {l}
        v_mov_b32 {t}, {sA}
        v_and_b32 {t2}, FLN, {l}
        v_cndmask_b32 {self.fs}, {self.fs}, {t}, {mk}
        v_lshl_add_u32 {self.fs}, {t2}, FLS, {self.fs}
        v_and_b32 {t}, 31, {l}
        v_lshlrev_b32 {self.fa}, 2, {t}
        s_lshl1_add_u32 {sA}, {sR64}, {sRG}
        s_lshl_b32 {sA}, {sA}, 5
        v_add_u32 {self.row}, {sA}, {t}
        s_lshl1_add_u32 {sB}, {sCOL}, {sCG}
        s_lshl_b32 {sB}, {sB}, 6
        s_bfe_u32 {sA}, {sR64}, 0x10002
        s_add_u32 {sB}, {sB}, {sA}
        s_lshl_b32 {sB}, {sB}, 7
        s_add_u32 {sB}, {sB}, {FA}
        v_lshl_add_u32 {self.fp}, {t}, 8, {sB}
        v_cmp_lt_u32 {mk}, 31, {l}
        s_mul_i32 {sA}, {sR64}, 28
        s_add_u32 {sB}, {sA}, {w7}
        s_add_u32 {sA}, {sA}, {sB}
        s_lshl_b32 {sB}, {sB}, 7
        s_add_u32 {sB}, {sB}, {FH0}
        v_min_u32 {t}, 6, {t}
        v_lshl_add_u32 {t}, {t}, 7, {sB}
        v_add_u32 {self.fh}, {FH1 - FH0}, {t}
        v_cndmask_b32 {self.fp}, {self.fp}, {t}, {mk}
        s_lshl_b32 {sB}, {sR64}, 8
        s_add_u32 {sB}, {sB}, {FG}
        v_mov_b32 {t2}, {sB}
        v_cndmask_b32 {self.fh}, {self.fh}, {t2}, {mk}
        s_lshl_b32 {sA}, {sA}, 12
        s_lshl_b32 {sB}, {sRG}, 11
        s_add_u32 {sB}, {sB}, {sA}
        v_add_u32 {self.hv[0]}, {sB}, {self.l16}
        v_xor_b32 {self.hv[1]}, 0x800, {self.hv[0]}'''.replace('FLN', '31' if self.I('fd', 0) else '7').replace('FLS', '2' if self.I('fd', 0) else '4'))
        self.late_free = lambda: S.free(sA, sB, mk, r, w7)
        return head, early, s

    def slot(self, it): return L_R + self.slots[it] * 16384
    def dma(self, it):
        s = Stream(); sT = self.sDM; pre = ''
        if it < 14 and it % 2 == 0: v, srd, so = self.vx, 's[40:43]', self.sXO[it // 2]
        elif it < 21:
            c = it // 2 if it < 14 else it - 14
            v, srd, so = self.vw, 's[44:47]', sT
            pre = f's_mul_i32 {sT}, {self.sXO[c]}, 1792\n'
        else:
            v, srd, so = self.vd, 's[48:51]', self.sDU[(it - 21) % 7]
            if it >= 28: pre = f's_add_u32 {sT}, {so}, {896*896}\n'; so = sT
        if it == 14: s.atom('s_add_u32 s44, s44, 1792\ns_addc_u32 s45, s45, 0\ns_sub_u32 s46, s46, 1792')
        s.atom(f's_add_u32 m0, {self.sLW}, {self.slot(it)}\n{pre}')
        for i in range(4): s(f'buffer_load_dwordx4 {v[i]}, {srd}, {so} offen offset:{1024 * i} lds', tag=f'it{it}')
        return s
    def G(self, p, kk, n=0): return 8 + 4 * (p * 28 + kk) + n
    def syncs(self):
        d = {C: [C] for C in range(7)}
        L = [int(x) for x in self.opt['bar2'].split(',')] + [14]
        for a, b in zip(L, L[1:]): d[a] = list(range(a, b))
        return d
    def citems(self, C): return [2*C, 2*C + 1] if C < 7 else [7 + C]
    def bar_gap(self, C):
        K = 4 * C - 2; return self.G(K // 28, K % 28, 0)
    def plan(self):
        I = self.I; G = self.G; sy = self.syncs()
        self.drs = {n: G(1, I('dr0', 18)) + I('drs', 10) * n for n in range(7)}
        bars = sorted(sy) + [14]
        def freed(it):
            if it >= 28: return 10**6
            if it >= 21: return self.drs[it - 21] + 9
            C = it // 2 if it < 14 else it - 7
            return self.bar_gap(min(b for b in bars if b > C)) + 1
        def need(it):
            if it < 21:
                C = it // 2 if it < 14 else it - 7
                b = max(x for x in sy if x <= C)
                return self.bar_gap(b) if b else -1
            return self.drs[it - 21] if it < 28 else 10**6
        free = {k: 0 for k in range(8)}; free[0] = self.bar_gap(1) + 1
        self.slots = {}; self.iss = {}
        order = [1, 0, 3, 2, 4, 5, 6] + list(range(7, 35))
        for it in order:
            k = min(free, key=lambda k: (free[k], k == 0))
            self.slots[it] = k; self.iss[it] = free[k]; free[k] = freed(it)
        self.need = need
        return order

    def kg_dt(self, t):
        s = Stream(); sT = self.sT
        s(f'''
        s_mov_b32 m0, {self.sSC}
        s_lshl_b32 {sT}, {self.sRG}, 4
        v_mov_b32 {t}, {f2h(LOG2E)}
        s_lshr_b32 {self.sLD}, {self.sLD}, {sT}
        s_lshl_b32 {self.sLD}, {self.sLD}, 16
        s_lshr_b32 {self.sDS}, {self.sDS}, {sT}
        s_lshl_b32 {self.sDS}, {self.sDS}, 16
        v_mul_f32 {t}, {self.sLD}, {t}
        v_exp_f32 {t}, {t}
        v_cvt_pk_bf16_f32 {t}, {t}, {t}
        v_lshlrev_b32 {self.dt[0]}, 16, {t}
        v_lshlrev_b32 {self.dt[1]}, 16, {t}''')
        return s
    def kg_unit(self, u, R, Yf, Xf):
        s = Stream(); dt = self.dt; af = self.af
        P, tmp, cv, z, z2, z4, y8, c, X = R
        def cm(items):
            for d, a, b in items:
                s(f'''v_pk_mul_f32 {tmp}, {a}, {b} op_sel:[0,0] op_sel_hi:[0,1]
                v_pk_fma_f32 {d}, {a}, {b}, {tmp} op_sel:[1,1,0] op_sel_hi:[1,0,1] neg_lo:[0,1,0]''')
        def emit(lst, neg=False):
            for n, (val, rows) in enumerate(lst): s(f'v_cvt_pk_bf16_f32 {cv[n]}, {val[0]}, {"-" if neg else ""}{val[1]}')
            for n, (val, rows) in enumerate(lst):
                for r in rows: s(f'ds_write_addtid_b32 {cv[n]} offset:{r * 272}')
        cc = [c.sub(2*n, 2) for n in range(8)]; XX = [X.sub(2*n, 2) for n in range(9)]; X2 = cc
        def unp(a, b):
            for n in range(a, b): s(f'v_lshlrev_b32 {P[n]}, 16, {self.par[n]}' if u == 0 else f'v_and_b32 {P[n]}, 0xffff0000, {self.par[n]}')
        unp(0, 2)
        if u == 0: s.add(self.st('k0a'))
        A = P.sub(0, 2); B = P.sub(2, 2); C = P.sub(4, 2); y1 = cc[1]; T = cv
        s(f'''v_pk_mul_f32 {A}, {A}, {dt}
        v_mul_f32 {A[0]}, {f2h(LOG2E)}, {A[0]}
        v_mul_f32 {A[1]}, 0.15915494, {A[1]}
        v_mul_f32 {T[0]}, 0x41000000, {A[0]}
        v_mul_f32 {T[1]}, 0x41000000, {A[1]}
        v_rndne_f32 {T[2]}, {A[1]}
        v_rndne_f32 {T[3]}, {T[1]}
        v_exp_f32 {T[4]}, {T[0]}
        v_sub_f32 {T[1]}, {T[1]}, {T[3]}
        v_sub_f32 {A[1]}, {A[1]}, {T[2]}
        v_cos_f32 {y1[0]}, {T[1]}
        v_sin_f32 {y1[1]}, {T[1]}
        v_exp_f32 {T[6]}, {A[0]}
        v_cos_f32 {z[0]}, {A[1]}
        v_sin_f32 {z[1]}, {A[1]}
        v_pk_mul_f32 {y1}, {y1}, {T.sub(4, 2)} op_sel_hi:[1,0]
        v_pk_mul_f32 {z}, {z}, {T.sub(6, 2)} op_sel_hi:[1,0]''')
        cm([(cc[2], y1, y1), (cc[3], cc[2], y1), (cc[4], cc[2], cc[2])])
        cm([(cc[5], cc[4], y1), (cc[6], cc[4], cc[2]), (cc[7], cc[4], cc[3]), (y8, cc[4], cc[4])])
        s(f'v_pk_mov_b32 {XX[8]}, {y1}, {y1} op_sel:[0,1]')
        emit([(('1.0', '0'), [0])] + [(cc[n], [n]) for n in range(1, 8)])
        cm([(cc[n], cc[n], y8) for n in range(1, 8)])
        emit([(y8, [8])] + [(cc[n], [8 + n]) for n in range(1, 8)])
        cm([(cc[0], y8, y8)] + [(cc[n], cc[n], y8) for n in range(1, 8)])
        emit([(cc[n], [16 + n]) for n in range(8)])
        Vv = A
        cm([(Vv, cc[0], cc[0])])
        cm([(cc[n], cc[n], y8) for n in range(8)])
        emit([(cc[n], [24 + n]) for n in range(8)])
        for st in range(8): s(f'ds_read_b128 {Yf.sub(4*st, 4)}, {af} offset:{32 * st}')
        unp(2, 6); s(f'v_pk_mul_f32 {B}, {B}, {dt}')
        cm([(XX[0], C, B), (z2, z, z), (XX[1], XX[0], z), (z4, z2, z2), (XX[8], XX[8], XX[0])])
        cm([(XX[2], XX[0], z2), (XX[3], XX[1], z2), (XX[4], XX[0], z4), (XX[5], XX[1], z4), (XX[6], XX[2], z4), (XX[7], XX[3], z4)])
        emit([(XX[n], [n]) for n in range(8)], True)
        cm([(XX[n], XX[n], Vv) for n in (0, 4, 8, 2, 6)])
        cm([(X2[0], XX[0], Vv), (X2[1], XX[4], Vv), (X2[2], XX[8], Vv)])
        emit([(XX[0], [8]), (XX[4], [10, 12]), (XX[8], [14]), (XX[2], [9]), (XX[6], [13]), (X2[0], [16]), (X2[1], [17]), (X2[2], [18])], True)
        cm([(XX[0], X2[0], Vv), (XX[1], X2[1], Vv), (XX[2], X2[2], Vv), (X2[0], XX[0], Vv), (X2[1], XX[2], Vv)])
        emit([(XX[0], [20]), (XX[1], [21]), (XX[2], [22]), (X2[0], [24]), (X2[1], [25])], True)
        for h in range(1, 4): cm([(X2[2*h], X2[2*h - 2], Vv), (X2[2*h + 1], X2[2*h - 1], Vv)])
        emit([(X2[n], [24 + n]) for n in range(2, 8)], True)
        for st in range(8): s(f'ds_read_b128 {Xf.sub(4*st, 4)}, {af} offset:{32 * st}')
        mf = [f'{MF} {self.kacc}, {Xf.sub(4*st, 4)}, {Yf.sub(4*st, 4)}, {self.kacc if (u or st) else 0}' for st in range(8)]
        return s, mf
    def kgen(self, R, extra):
        F = [[self.Xr.sub(96 + 64*u, 32), self.Xr.sub(128 + 64*u, 32)] for u in range(2)]
        (u0, m0), (u1, m1) = [self.kg_unit(u, R, *F[u]) for u in range(2)]
        a = Stream(u0 + self.st('k1a') + u1); s = Stream(); grp = 0; dirty = False
        for n, at in enumerate(a):
            i = at[0]; prev = a[n - 1][0]
            if i.op == 'v_cvt_pk_bf16_f32' and prev.op != i.op:
                if grp >= 8: s(m0[grp - 8])
                if dirty: s(f's_mov_b32 m0, {self.sSC}'); dirty = False
            s.append(at)
            nxt = a[n + 1][0] if n + 1 < len(a) else None
            if i.kind == 'ds' and (nxt is None or nxt.kind != 'ds'):
                for h, x in extra.pop(grp, []):
                    if h: s.append([Ins(y.text) for y in h]); dirty = True
                    s.append(x)
                grp += 1
        assert not extra
        return s, m1
    def kexch(self, V):
        l = self.lane; acc = self.kacc; S = self.S
        o = V.alloc(8, 2); keep = acc.sub(0, 8); got = acc.sub(8, 8)
        aw_, ar_, kq, t, hl, d1, d2, d3 = [V.alloc() for _ in range(8)]
        msk = S.alloc(2, 2); m2 = S.alloc(2, 2); sk = S.alloc()
        k0 = Stream()
        k0(f'''s_lshl_b32 {sk}, {self.sW}, 11
        s_add_u32 {sk}, {sk}, {L_X}
        v_add_u32 {aw_}, {sk}, {self.l16}
        v_xor_b32 {ar_}, 0x800, {aw_}''')
        k0.atom(f's_cmp_eq_u32 {self.sCG}, 0\ns_cselect_b64 {msk}, -1, 0')
        k0(f'''s_mul_i32 {sk}, {self.sRG}, {KSTR}
        s_add_u32 {sk}, {sk}, {L_K + 64}
        v_and_b32 {t}, 31, {l}
        v_lshl_add_u32 {kq}, {t}, 4, {sk}
        v_lshrrev_b32 {hl}, 5, {l}
        v_lshl_add_u32 {d1}, {hl}, 3, {kq}
        v_cndmask_b32 {d1}, {ar_}, {d1}, {msk}
        v_lshl_add_u32 {d3}, {hl}, 9, {kq}
        v_cndmask_b32 {d3}, {d3}, {ar_}, {msk}
        v_subrev_u32 {t}, 2048, {ar_}
        v_lshl_add_u32 {d2}, {hl}, 10, {kq}
        v_cndmask_b32 {d2}, {d2}, {t}, {msk}
        v_cmp_eq_u32 {m2}, 0, {l}
        v_mov_b32 {t}, {self.sDS}
        v_and_b32 {hl}, 1, {l}
        v_cndmask_b32 {t}, 0, {t}, {m2}
        v_cmp_eq_u32 {m2}, 0, {hl}''')
        k1 = Stream()
        for n in range(8): k1(f'v_cndmask_b32 {o[n]}, {acc[n]}, {acc[8 + n]}, {msk}')
        k1w = Stream()(f'ds_write_b128 {aw_}, {o.sub(0, 4)}\nds_write_b128 {aw_}, {o.sub(4, 4)} offset:1024')
        k1b = Stream()
        for n in range(8): k1b(f'v_cndmask_b32 {keep[n]}, {acc[8 + n]}, {acc[n]}, {msk}')
        k2 = Stream()(f'ds_read_b128 {got.sub(0, 4)}, {ar_}\nds_read_b128 {got.sub(4, 4)}, {ar_} offset:1024', tag='k2')
        k3 = Stream(); k3('@wait k2')
        for n in range(8): k3(f'v_add_f32 {keep[n]}, {keep[n]}, {got[n]}')
        cv = lambda d, a, b: k3(f'v_cvt_pk_bf16_f32 {d}, {a}, {b}')
        k3(f'v_add_f32 {t}, {keep[0]}, {t}')
        cv(o[0], t, keep[1]); cv(o[1], keep[2], keep[3]); cv(o[2], keep[4], keep[4]); cv(o[3], keep[5], keep[6])
        cv(got[0], keep[0], keep[0]); cv(got[1], keep[0], keep[1]); cv(got[2], keep[1], keep[1]); cv(got[3], keep[2], keep[2])
        k3(f'''v_cndmask_b32 {keep[0]}, {keep[5]}, {keep[4]}, {m2}
        v_cndmask_b32 {keep[1]}, {keep[7]}, {keep[6]}, {m2}''')
        cv(got[4], keep[4], keep[4]); cv(got[5], keep[4], keep[4]); cv(got[6], keep[0], keep[5]); cv(got[7], keep[5], keep[5])
        cv(o[4], keep[6], keep[6]); cv(o[5], keep[6], keep[6]); cv(o[6], keep[1], keep[7]); cv(o[7], keep[7], keep[7])
        k3w = Stream()(f'''ds_write2_b64 {d1}, {o.sub(0, 2)}, {o.sub(2, 2)} offset1:64
        ds_write_b128 {d3}, {got.sub(0, 4)} offset:1024
        ds_write_b128 {d2}, {got.sub(4, 4)} offset:2048
        ds_write_b128 {d2}, {o.sub(4, 4)} offset:2560''')
        return k0, k1, k1w, k1b, k2, k3, k3w

    def g1_reads(self, K):
        p, kk = divmod(K, 28); c, ks = divmod(kk, 4)
        w, off = win(self.slot(2 * c + 1 if p == 0 else 14 + c))
        buf = self.Wf[K % 3]; out = []
        for h in range(2):
            s = Stream()
            for t in range(2):
                s(f'ds_read_b64_tr_b16 {buf.sub(4*h + 2*t, 2)}, {self.aw[w]} offset:{off + h*8192 + ks*2048 + t*512}', tag=f'r{K}')
            if p == 0:
                wx, offx = win(self.slot(2 * c))
                s(f'ds_read_b128 {self.Xr.sub(8*kk + 4*h, 4)}, {self.ax[wx][ks]} offset:{offx + h*4096}', tag=f'r{K}')
            out.append(s)
        return out
    def gemm1(self, sc, mf0):
        sy = self.syncs()
        for x in mf0: sc.mfma(x)
        og = self.I('og', 0)
        sc.gaps[og]('@wait it0 it1\ns_barrier'); sc.at(og, self.st('ob'))
        for j, x in enumerate(self.g1_reads(0) + self.g1_reads(1)): sc.at(min(6, og + 2*j), x)
        sc.tail(7, Stream()('@wait r0'))
        for K in range(56):
            p, kk = divmod(K, 28)
            buf = self.Wf[K % 3]
            rd = self.g1_reads(K + 2) if K + 2 < 56 else [Stream(), Stream()]
            issync = K % 4 == 2 and ((K + 2) // 4 in sy or K == 54)
            for n in range(4):
                rt, mat = divmod(n, 2); a = self.acc[p][n]
                g = sc.mfma(f'{MF} {a}, {buf.sub(4*mat, 4)}, {self.Xr.sub(8*kk + 4*rt, 4)}, {a if kk else 0}')
                if n == 0 and issync:
                    its = ['udma'] if K == 54 else [f'it{i}' for C in sy[(K + 2) // 4] for i in self.citems(C)]
                    sc.here()('@wait LG ' + ' '.join(its) + '\ns_barrier')
                if n % 2 == 0: sc.here().add(rd[n // 2])
            if K + 1 < 56 and not issync: sc.tail(g, Stream()(f'@wait r{K + 1}'))
    def epi(self, p, mode, t, o):
        out = []; nb = 4 if mode == 'woven' else 16
        for rt in range(2):
            G = self.acc[p][2*rt]; U = self.acc[p][2*rt + 1]
            for b in range(0, 16, nb):
                R = range(b, b + nb); P = range(b, b + nb, 2); s = Stream()
                if mode == 'woven':
                    for r in R: s(f'v_mul_f32 {t[r]}, {G[r]}, {G[r]}')
                    for r in R: s(f'v_fma_f32 {t[r]}, {t[r]}, {self.c1[0]}, {self.c0[0]}')
                    for r in R: s(f'v_mul_f32 {t[r]}, {G[r]}, {t[r]}')
                    for r in R: s(f'v_exp_f32 {t[r]}, {t[r]}\nv_mul_f32 {U[r]}, {G[r]}, {U[r]}')
                else:
                    for r in P: s(f'v_pk_mul_f32 {t.sub(r, 2)}, {G.sub(r, 2)}, {G.sub(r, 2)}')
                    for r in P: s(f'v_pk_fma_f32 {t.sub(r, 2)}, {t.sub(r, 2)}, {self.c1}, {self.c0}')
                    for r in P: s(f'v_pk_mul_f32 {t.sub(r, 2)}, {G.sub(r, 2)}, {t.sub(r, 2)}')
                    for r in P: s(f'v_pk_mul_f32 {U.sub(r, 2)}, {G.sub(r, 2)}, {U.sub(r, 2)}')
                    out.append(('pk', s)); s = Stream()
                    for r in R: s(f'v_exp_f32 {t[r]}, {t[r]}')
                if mode == 'pk':
                    out.append(('v', s)); s = Stream()
                    for r in P: s(f'v_pk_add_f32 {t.sub(r, 2)}, {t.sub(r, 2)}, 1.0 op_sel_hi:[1,0]')
                    out.append(('pk', s)); s = Stream()
                else:
                    for r in R: s(f'v_add_f32 {t[r]}, 1.0, {t[r]}')
                for r in R: s(f'v_rcp_f32 {t[r]}, {t[r]}')
                if mode in ('pk', 'pkB'):
                    out.append(('v', s)); s = Stream()
                    for r in P: s(f'v_pk_mul_f32 {U.sub(r, 2)}, {U.sub(r, 2)}, {t.sub(r, 2)}')
                else:
                    for r in R: s(f'v_mul_f32 {U[r]}, {U[r]}, {t[r]}')
                for r in P:
                    s(f'v_cvt_pk_bf16_f32 {o[8*rt + r // 2]}, {U[r]}, {U[r + 1]}')
                    if p == 1 and r % 8 == 6: s.add(self.hst(1, 2*rt + r // 8, o))
                out.append(('pk' if mode in ('pk', 'pkB') else 'v', s))
        return out
    def hst(self, p, q, o):
        return Stream()(f'buffer_store_dwordx4 {o.sub(4*q, 4)}, {self.l16}, s[52:55], {self.sH1 if p else self.sH} offen offset:{q * 1024} sc1', tag=f'hst{p}')
    def clears(self):
        s = Stream()
        for q in range(2): s(f'buffer_store_dwordx4 {self.ff}, {self.av}, s[52:55], 0 offen offset:{(128 if self.I("xa", 1) else 64) * q} sc1', tag='clr')
        return s
    def setflags(self, p):
        s = Stream()
        if self.I('fd', 0):
            s('@waitvm ' + ('hst1' if p else 'clr hst0'))
            if p == 0: s(f'buffer_store_dword {self.ff[0]}, {self.fs}, s[52:55], 0 offen sc1')
            else: s.atom(f'''s_mov_b32 {self.sT2}, {FH1 - FH0}
            s_mov_b32 exec_hi, 0
            buffer_store_dword {self.ff[0]}, {self.fs}, s[52:55], {self.sT2} offen sc1
            s_mov_b32 exec_hi, -1''')
        elif p == 0:
            s('@waitvm clr hst0')
            s.atom(f'''s_mov_b64 exec, 0xffff
            buffer_store_dwordx4 {self.ff}, {self.fs}, s[52:55], 0 offen sc1
            s_mov_b64 exec, -1''')
        else:
            s('@waitvm hst1')
            s.atom(f'''s_mov_b32 {self.sT2}, {FH1 - FH0}
            s_mov_b64 exec, 0xff
            buffer_store_dwordx4 {self.ff}, {self.fs}, s[52:55], {self.sT2} offen sc1
            s_mov_b64 exec, -1''')
        return s
    def u_dma(self):
        s = Stream()
        s.atom(f'''s_mul_i32 {self.sDM}, {self.sRG}, {USTR}
        s_lshl_b32 {self.sT2}, {self.sCG}, 11
        s_add_u32 {self.sDM}, {self.sDM}, {self.sT2}
        s_add_u32 m0, {self.sDM}, {L_U + UPAD}''')
        s.atom(f'''s_lshl2_add_u32 {self.sDM}, {self.sM}, {self.sW}
        s_lshl_b32 {self.sDM}, {self.sDM}, 11
        s_add_u32 {self.sDM}, {self.sDM}, {UOFF}''')
        for q in range(2): s(f'buffer_load_dwordx4 {self.l16}, s[52:55], {self.sDM} offen offset:{1024 * q} sc1 lds', tag='udma')
        return s

    def conv(self, sc):
        F = self.cF
        def reads(r):
            o = Stream(); b = F[r % 2]
            for n in range(4):
                c = r + 8 * n
                for t in range(2):
                    o(f'ds_read_b64_tr_b16 {b.sub(4*n + 2*t, 2)}, {self.ak} offset:{128*c + 32*(1 - t)}', tag=f'cv{r}')
                o(f'ds_read_b128 {b.sub(16 + 4*n, 4)}, {self.au} offset:{(16*n + 14 - 2*r) * 64}', tag=f'cv{r}')
            return o
        order = [(0, 0), (0, 1), (1, 0), (0, 2), (1, 1), (2, 0), (0, 3), (1, 2), (2, 1), (3, 0)]
        for r in range(8):
            nx = reads(r + 1) if r < 7 else Stream()
            b = F[r % 2]; seen = set()
            sc.tail(sc.n() - 1, Stream()(f'@wait cv{r}'))
            for n, (i, d) in enumerate(order):
                z = self.Z[i + d]
                first = (r == 0 and (i + d) not in seen); seen.add(i + d)
                sc.mfma(f'{MF} {z}, {b.sub(4*i, 4)}, {b.sub(16 + 4*d, 4)}, {0 if first else z}')
                if n % 2 == 0: sc.here().add(nx[3 * (n // 2):3 * (n // 2) + 3])
        return reads(0)
    def convpost(self):
        s = Stream(); V = self.V; Z = self.Z
        ex = V.alloc(4, 2); ex2 = V.alloc(); ac = V.alloc(); ar = V.alloc(); mk = self.S.alloc(2, 2)
        M = 'row_mask:0xf bank_mask:'
        def level(Ta, Tb, na, sh, d, m0, m1, extra):
            T = Ta + extra
            for r in range(na + d - 1, d - 1, -1):
                if r < na: s(f'v_add_f32_dpp {T[r]}, {Ta[r - d]}, {T[r]} row_shl:{sh} {M}{m0}')
                else: s(f'v_mov_b32_dpp {T[r]}, {Ta[r - d]} row_shl:{sh} {M}{m0}')
            for r in range(na + d - 1, -1, -1):
                if r < d: s(f'v_mov_b32_dpp {T[r]}, {Tb[r]} row_shr:{sh} {M}{m1}')
                elif r < na: s(f'v_add_f32_dpp {T[r]}, {Tb[r]}, {Tb[r - d]} row_shr:{sh} {M}{m1}')
                else: s(f'v_mov_b32_dpp {T[r]}, {Tb[r - d]} quad_perm:[0,1,2,3] {M}{m1}')
                if d == 2 and r == 16: s(f'ds_write_b128 {ac}, {ex} offset:16', tag='carry')
            return T
        s0 = Stream(); self.sMK = self.S.alloc(4, 2)
        for k in range(4): s0(f's_mov_b32 {self.sMK[k]}, {"0x55555555" if k < 2 else "0x33333333"}')
        s0(f'v_cmp_ne_u32 {mk}, 0, {self.vg}')
        s0.atom(f'''s_mul_i32 {self.sT2}, {self.sRG}, 2064
        s_add_u32 {self.sT2}, {self.sT2}, {L_C}
        v_lshl_add_u32 {ac}, {self.vg}, 4, {self.sT2}''')
        s0(f'v_cndmask_b32 {ar}, {L_K}, {ac}, {mk}')
        L = lambda z: [z[r] for r in range(16)]
        T01 = level(L(Z[0]), L(Z[1]), 16, 4, 1, '0x5', '0xa', [ex[0]]); n01 = len(s)
        T23 = level(L(Z[2]), L(Z[3]), 16, 4, 1, '0x5', '0xa', [ex2])
        Y = level(T01, T23, 17, 8, 2, '0x3', '0xc', [ex[1], ex[2]])
        s2 = Stream(); o = Z[1]
        s2(f'ds_read_b128 {ex}, {ar}')
        for q in range(2, 8): s2(f'v_cvt_pk_bf16_f32 {o[q]}, {Y[2*q]}, {Y[2*q + 1]}')
        s3 = Stream()
        for r in range(3): s3(f'v_add_f32 {Y[r]}, {Y[r]}, {ex[r]}')
        for q in range(2): s3(f'v_cvt_pk_bf16_f32 {o[q]}, {Y[2*q]}, {Y[2*q + 1]}')
        s4 = Stream()
        if self.I('xa', 1): s3.add(self.xpose(o.sub(0, 4), o.sub(4, 4), o.sub(8, 4))[0])
        s4(f'''buffer_store_dwordx4 {o.sub(4, 4)}, {self.av}, s[52:55], 0 offen offset:{128 if self.I('xa', 1) else 64} sc1
        buffer_store_dwordx4 {o.sub(0, 4)}, {self.av}, s[52:55], 0 offen sc1''')
        return s0, s, s2, s3, s4

    def h_ld(self, n, k):
        fr, rt = divmod(k, 2)
        return f'buffer_load_dwordx4 {self.Hf.sub(16*n + 8*fr + 4*rt, 4)}, {self.hv[rt]}, s[52:55], {self.sHU[n]} offen offset:{fr * 1024} sc1'
    def d_reads(self, p, n):
        s = Stream(); it = 21 + 7*p + n; dst = self.D.sub(16*n, 16)
        w, off = win(self.slot(it))
        s(f'@waitvm it{it}')
        for fr in range(2):
            for dt in range(2):
                for t in range(2):
                    s(f'ds_read_b64_tr_b16 {dst.sub(8*fr + 4*dt + 2*t, 2)}, {self.ad[dt][w]} offset:{off + fr*2048 + t*1024}', tag=f'dr{it}')
        return s
    def g2(self, sc, p, n, fr, sl):
        rt, dt = divmod(sl, 2); a = self.acc2[sl]
        return sc.mfma(f'{MF} {a}, {self.D.sub(16*n + 8*fr + 4*dt, 4)}, {self.Hf.sub(16*n + 8*fr + 4*rt, 4)}, {a if (p or n or fr) else 0}')
    def g_load(self):
        s = Stream(); self.gg = self.V.alloc(2)
        s.atom(f'''v_lshlrev_b32 {self.fa}, 3, {self.row}
        s_mov_b32 {self.sT2}, {GOFF}
        buffer_load_dwordx2 {self.gg}, {self.fa}, s[52:55], {self.sT2} offen sc1''')
        return s
    def final(self, V):
        l = self.lane; sT = self.sT; sT2 = self.sT2; pk = self.I('bfx', 0)
        ga = V.alloc(16, 2); ab = V.alloc(8, 2); o = V.alloc(8, 2); aa = V.alloc(2)
        a, t, abw, abr = [V.alloc() for _ in range(4)]; ar = V.alloc(3, 1); aw3 = V.alloc(3, 1)
        base = [self.slot(28 + k - 1) for k in range(4)]
        pre = Stream()
        pre.atom(f'''s_lshl1_add_u32 {sT2}, {self.sCOL}, {self.sCG}
        s_lshl_b32 {sT2}, {sT2}, 9
        s_lshr_b32 {sT}, {self.sR64}, 1
        s_add_u32 {sT2}, {sT2}, {sT}
        s_lshl_b32 {sT2}, {sT2}, 8
        v_lshrrev_b32 {t}, 2, {l}
        v_lshl_add_u32 {aa[0]}, {t}, 12, {sT2}''')
        pre.atom(f'''s_and_b32 {sT}, {self.sR64}, 1
        s_lshl1_add_u32 {sT}, {sT}, {self.sRG}
        s_lshl_b32 {sT}, {sT}, {2 if self.I('xa', 1) else 0}
        s_lshl4_add_u32 {sT}, {sT}, {AOFF}
        v_add_u32 {aa[0]}, {sT}, {aa[0]}''')
        pre(f'''v_and_b32 {t}, 3, {l}
        v_lshl_add_u32 {aa[0]}, {t}, {4 if self.I('xa', 1) else 6}, {aa[0]}
        v_add_u32 {aa[1]}, 0x10000, {aa[0]}''')
        pre.atom(f'''s_lshl_b32 {sT2}, {self.sW}, 11
        s_add_u32 {sT2}, {sT2}, {L_AB}
        v_add_u32 {abw}, {sT2}, {self.l16}
        v_lshl_add_u32 {abr}, {t}, 3, {sT2}''')
        pre(f'''v_bfe_u32 {t}, {l}, 2, 2
        v_lshl_add_u32 {abr}, {t}, 6, {abr}
        v_bfe_u32 {t}, {l}, 4, 1
        v_lshl_add_u32 {abr}, {t}, 5, {abr}
        v_lshrrev_b32 {t}, 5, {l}
        v_lshl_add_u32 {abr}, {t}, 10, {abr}
        v_add_u32 {a}, {self.sLW}, {self.l16}''')
        for k in (1, 2, 3):
            pre(f'''v_xor_b32 {ar[k-1]}, {k * 4096}, {a}
            v_add_u32 {ar[k-1]}, {base[k]}, {ar[k-1]}
            v_add_u32 {aw3[k-1]}, {base[k]}, {a}''')
        pre.atom(f'''s_lshl1_add_u32 {sT2}, {self.sCOL}, {self.sCG}
        s_lshl_b32 {sT2}, {sT2}, 6
        v_and_b32 {a}, {-4 if self.I('xo', 1) else -1}, {self.row}
        v_mul_u32_u24 {a}, 896, {a}
        v_add_u32 {a}, {sT2}, {a}''')
        if self.I('xo', 1): pre(f'''v_mul_u32_u24 {t}, 896, {t}
        v_add_u32 {a}, {t}, {a}
        v_and_b32 {t}, 3, {l}
        v_lshl_add_u32 {a}, {t}, 4, {a}''')
        else: pre(f'v_lshl_add_u32 {a}, {t}, 5, {a}')
        ald = '\n'.join(f'buffer_load_dwordx4 {ab.sub(4*q, 4)}, {aa[q]}, s[52:55], 0 offen sc1' for q in range(2))
        m = self.fl
        test = f'''v_max3_u32 {m}, {ab[0]}, {ab[1]}, {ab[2]}
        v_max3_u32 {m}, {m}, {ab[3]}, {ab[4]}
        v_max3_u32 {m}, {m}, {ab[5]}, {ab[6]}
        v_max_u32 {m}, {m}, {ab[7]}
        v_cmp_eq_u32 vcc, -1, {m}'''
        if self.opt.get('drop'): test = test.replace('vcc, -1,', 'vcc, 0x12345,')
        ap1 = self.check(test, ald)
        ap1(f'ds_write_b128 {abw}, {ab.sub(0, 4)}\nds_write_b128 {abw}, {ab.sub(4, 4)} offset:1024')
        for j in range(4): ap1(f'ds_read_b64_tr_b16 {ab.sub(2*j, 2)}, {abr} offset:{j * 256}')
        ap2 = Stream()
        for q in range(8): ap2(f'v_lshlrev_b32 {ga[2*q]}, 16, {ab[q]}\nv_and_b32 {ga[2*q + 1]}, 0xffff0000, {ab[q]}')
        ap3 = Stream(); ap3k = Stream()
        for r in range(16): ap3(f'v_mul_f32 {ga[r]}, {self.gg[0]}, {ga[r]}')
        for r in range(0, 16, 2): ap3k(f'v_pk_mul_f32 {ga.sub(r, 2)}, {ga.sub(r, 2)}, {self.gg} op_sel_hi:[1,0]')
        wr = {}
        for k in (1, 2, 3):
            wr[k] = Stream()
            for q in range(4): wr[k](f'ds_write_b128 {aw3[k-1]}, {self.acc2[k].sub(4*q, 4)} offset:{q * 1024}')
        P = self.acc2; rd = {}
        for k in (1, 2, 3):
            rd[k] = Stream()
            for q in range(4): rd[k](f'ds_read_b128 {P[k].sub(4*q, 4)}, {ar[k-1]} offset:{q * 1024}')
        b = P[0]
        def store():
            s2 = Stream(); x = self.xpose(o.sub(0, 4), o.sub(4, 4), P[1].sub(0, 4))[0]
            first = x[0][0]; x[0] = x[0][1:]
            last = x[-1]; x[-1:] = []; x.insert(1, last[:1]); x.append(last[1:])
            s2.add(x)
            for q in range(2): s2(f'buffer_store_dwordx4 {o.sub(4*q, 4)}, {a}, s[56:59], 0 offen offset:{1792 * q}')
            return [first], s2
        def fin(ks, late_a):
            s1 = Stream(); s2 = Stream(); first, st = store()
            for q in range(4):
                for k in ks:
                    for r in (4*q, 4*q + 2): s1(f'v_pk_add_f32 {b.sub(r, 2)}, {b.sub(r, 2)}, {P[k].sub(r, 2)}')
                if late_a:
                    for r in (4*q, 4*q + 2): s1(f'v_pk_mul_f32 {b.sub(r, 2)}, {b.sub(r, 2)}, {self.gg} op_sel:[0,1] op_sel_hi:[1,1]')
                    s2.add(ap2[4*q:4*q + 4])
                    for r in (4*q, 4*q + 2): s2(f'v_pk_fma_f32 {b.sub(r, 2)}, {ga.sub(r, 2)}, {self.gg}, {b.sub(r, 2)} op_sel_hi:[1,0,1]')
                    for r in (4*q, 4*q + 2): s2(f'v_cvt_pk_bf16_f32 {o[r // 2]}, {b[r]}, {b[r + 1]}')
                else:
                    for r in (4*q, 4*q + 2): s1(f'v_pk_fma_f32 {b.sub(r, 2)}, {b.sub(r, 2)}, {self.gg}, {ga.sub(r, 2)} op_sel:[0,1,0] op_sel_hi:[1,1,1]')
                    for r in (4*q, 4*q + 2): s1(f'v_cvt_pk_bf16_f32 {o[r // 2]}, {b[r]}, {b[r + 1]}')
            return Stream([first] + s1 + s2 + st)
        def pre_add(ks):
            s2 = Stream()
            for k in ks:
                for r in range(0, 16, 2): s2(f'v_pk_add_f32 {P[0].sub(r, 2)}, {P[0].sub(r, 2)}, {P[k].sub(r, 2)}')
            return s2
        return pre, Stream()(ald), ap1, ap2, ap3, ap3k, wr, rd, fin, pre_add

    def helper(self):
        s = Stream(); l = self.lane; W = self.sW; o = self.opt
        V = Regs('v', 256, 8); T = 's3'; T2 = 's95'; T3 = 's94'
        hst = [0]
        def stamp():
            if o.get('trace'): s(f'@tr h{hst[0]}'); hst[0] += 1
        def flag(txt, n, ex=1):
            s.atom(f'''s_cmp_eq_u32 {W}, 0
            s_cbranch_scc0 L_h{n}
            s_mov_b64 exec, {ex}
            {txt}
            s_mov_b64 exec, -1
            L_h{n}:''', tag='nocount')
        s('@forget\n@trreset\nL_helper:')
        r8 = V.alloc(); c8 = V.alloc(); t = V.alloc(); t2 = V.alloc(); vx = V.alloc(2); zero = V.alloc(4); fo = V.alloc(); to = V.alloc()
        tw = V.alloc(); fg = V.alloc(); d = V.alloc(4); one = V.alloc(4); fd = V.alloc(); fo2 = V.alloc(); to2 = V.alloc()
        s(f'''
        s_and_b32 {T}, s2, 7
        s_lshr_b32 {T2}, s2, 3
        s_lshl2_add_u32 {T3}, {T}, {T2}
        s_lshr_b32 {T}, {T}, 1
        s_lshl2_add_u32 {T}, {T}, {T2}        ; hid
        s_mul_i32 {T}, {T}, {28*3584}
        s_and_b32 {T2}, s2, 1
        s_mul_i32 {T2}, {T2}, {7*128}
        s_add_u32 {T}, {T}, {T2}
        v_min_u32 {to}, 195, v0
        v_mul_u32_u24 {tw}, 9363, {to}
        v_lshrrev_b32 {tw}, 16, {tw}
        v_mul_u32_u24 {tw}, {3584 - 7*128}, {tw}
        v_lshl_add_u32 {tw}, {to}, 7, {tw}
        v_add_u32 {tw}, {T}, {tw}
        v_mov_b32 {zero[0]}, 0
        v_mov_b32 {zero[1]}, 0
        v_mov_b32 {zero[2]}, 0
        v_mov_b32 {zero[3]}, 0
        v_mov_b32 {one[0]}, -1
        v_mov_b32 {one[1]}, -1
        v_mov_b32 {one[2]}, -1
        v_mov_b32 {one[3]}, -1
        s_mul_i32 {T}, s2, {84*128}
        s_add_u32 {T}, {T}, {FOFF}
        v_lshl_add_u32 {fo}, v0, 4, {T}
        v_add_u32 {fo2}, 8192, {fo}
        s_lshl_b32 {T}, {T3}, 8
        s_add_u32 {T}, {T}, {FG}
        v_and_b32 {fg}, 15, v0
        v_lshl_add_u32 {fg}, {fg}, 4, {T}
        v_cmp_lt_u32 vcc, 159, v0
        v_cndmask_b32 {fo2}, {fo2}, {fg}, vcc
        v_mov_b32 {t}, 0x7fffff00
        v_cmp_gt_u32 vcc, 176, v0
        v_cndmask_b32 {fo2}, {t}, {fo2}, vcc
        v_lshrrev_b32 {r8}, 3, {l}
        v_and_b32 {c8}, 7, {l}
        v_lshrrev_b32 {t2}, 4, {l}
        s_lshl2_add_u32 {T}, {T3}, {W}
        s_mul_i32 {T}, {T}, {16*896}
        v_mul_u32_u24 {t}, 896, {r8}
        v_add_u32 {t}, {T}, {t}
        v_xor_b32 {t2}, {c8}, {t2}
        v_lshl_add_u32 {vx[0]}, {t2}, 4, {t}
        v_xor_b32 {t2}, 4, {t2}
        v_lshl_add_u32 {vx[1]}, {t2}, 4, {t}
        v_add_u32 {vx[1]}, {8*896 - 1024}, {vx[1]}
        s_lshl_b32 {T}, {T3}, 2
        v_mov_b32 {fd}, {T}
        s_mul_i32 {T}, s2, 196
        v_add_u32 {to}, {T}, {to}
        v_lshlrev_b32 {to}, 7, {to}
        v_add_u32 {to2}, {896*896}, {to}
        s_waitcnt lgkmcnt(0)''')
        self.srd(s, 52, 's36', 's37', WSB)
        s(f'''s_mov_b32 {T}, 4096
        buffer_store_dwordx4 {zero}, {fo}, s[52:55], 0 offen sc1
        buffer_store_dwordx4 {zero}, {fo}, s[52:55], {T} offen sc1
        buffer_store_dwordx4 {zero}, {fo2}, s[52:55], 0 offen sc1''', tag='fc')
        self.srd(s, 40, 's4', 's5', 2048 * 896)
        a = V.alloc(); uo = V.alloc(); ub = V.alloc(56, 2); bw = V.alloc(); br = V.alloc()
        B0 = 65536
        s(f'''
        v_bfe_u32 {t}, {l}, 2, 2
        v_lshrrev_b32 {t2}, 4, {l}
        v_lshl_add_u32 {a}, {t}, 2, {t2}
        v_lshlrev_b32 {a}, 7, {a}
        v_lshrrev_b32 {bw}, 5, {l}
        v_lshl_add_u32 {t}, {t}, 1, {bw}
        v_bfe_u32 {bw}, {l}, 1, 1
        s_lshl_b32 {T}, {W}, 1
        v_add_u32 {bw}, {T}, {bw}
        v_xor_b32 {t}, {t}, {bw}
        v_lshl_add_u32 {a}, {t}, 4, {a}
        v_and_b32 {t}, 1, {l}
        v_lshl_add_u32 {a}, {t}, 3, {a}
        s_mul_i32 {T}, {W}, {7*16*144}
        s_add_u32 {T}, {T}, {B0}
        v_and_b32 {t}, 15, {l}
        v_mul_u32_u24 {t}, 144, {t}
        v_lshl_add_u32 {t}, {t2}, 4, {t}
        v_add_u32 {bw}, {T}, {t}
        v_mul_u32_u24 {t}, 144, {r8}
        v_lshl_add_u32 {t}, {c8}, 4, {t}
        v_add_u32 {br}, {T}, {t}
        v_lshlrev_b32 {uo}, 12, {r8}
        v_lshl_add_u32 {uo}, {c8}, 4, {uo}''')
        tW = f'global_load_dword {d[0]}, {tw}, s[24:25] offset:1792\nglobal_load_dword {d[1]}, {tw}, s[26:27] offset:1792'
        tD = f'global_load_dword {d[2]}, {to}, s[28:29]\nglobal_load_dword {d[3]}, {to2}, s[28:29]'
        def xdma():
            s(f's_lshl_b32 {T2}, {W}, 11')
            for c in range(7):
                s(f'''s_add_u32 m0, {T2}, {c * 8192}
                s_mov_b32 {T}, {c * 128}
                buffer_load_dwordx4 {vx[0]}, s[40:43], {T} offen lds
                buffer_load_dwordx4 {vx[1]}, s[40:43], {T} offen offset:1024 lds''', tag='hx')
        def flagA():
            s('@waitvm fc\ns_barrier'); flag(f'global_store_dword {fd}, {one[0]}, s[34:35] sc1', 0); stamp()
        for c in o['hord'].split('U')[0]:
            if c == 'A': flagA()
            if c == 'W': s(tW)
            if c == 'D': s(tD)
            if c == 'X': xdma()
        stamp()
        s(f'''s_lshl_b32 {T}, {W}, 16
        s_lshl_b32 {T2}, {T3}, 7
        s_add_u32 {T2}, {T2}, {T}
        s_add_u32 {T2}, {T2}, {UOFF}
        @waitvm hx
        s_barrier''')
        stamp()
        for n in range(7):
            for A in range(2):
                for tt in range(2):
                    s(f'ds_read_b64_tr_b16 {ub.sub(8*n + 4*A + 2*tt, 2)}, {a} offset:{n*8192 + A*4096 + tt*2048}')
        for n in range(8):
            if n < 7:
                for A in range(2): s(f'ds_write_b128 {bw}, {ub.sub(8*n + 4*A, 4)} offset:{n*16*144 + 64*A}')
                for h in range(2): s(f'ds_read_b128 {ub.sub(8*n + 4*h, 4)}, {br} offset:{n*16*144 + h*8*144}')
            if n:
                for h in range(2):
                    s(f's_add_u32 {T}, {T2}, {(n - 1) * 64 * 4096 + h * 8 * 4096}')
                    s(f'buffer_store_dwordx4 {ub.sub(8*(n - 1) + 4*h, 4)}, {uo}, s[52:55], {T} offen sc1', tag='ust')
        stamp()
        gs = V.alloc(56, 2); go = V.alloc(); xs = V.alloc(56, 2); xa = V.alloc(2)
        s(f'''v_and_b32 {go}, 3, v0
        v_lshlrev_b32 {t2}, 1, {go}
        v_lshlrev_b32 {go}, 5, {go}
        v_lshrrev_b32 {t}, 2, v0
        v_bfe_u32 {xa[0]}, v0, 3, 3
        v_xor_b32 {t2}, {t2}, {xa[0]}
        v_lshlrev_b32 {t}, 7, {t}
        v_lshl_add_u32 {xa[0]}, {t2}, 4, {t}
        v_xor_b32 {xa[1]}, 16, {xa[0]}''')
        for j in range(14): s(f'ds_read_b128 {xs.sub(4*j, 4)}, {xa[j%2]} offset:{8192*(j//2)}')
        gl = Stream()
        for j in range(14): gl(f'global_load_dwordx4 {gs.sub(4*j, 4)}, {go}, s[30:31] offset:{128*(j//2) + 16*(j%2)}')
        pf = Stream(); p0, p1 = [int(x) for x in o.get('hpf', '0,0').split(',')]
        if p1 > p0:
            assert o['r2'] == 'c'
            pa = V.alloc(); pu = V.alloc(); px = V.alloc(2)
            s(f'''v_min_u32 {pu}, 6, {r8}
            s_lshr_b32 {T}, s2, 3
            s_mul_i32 {T}, {T}, 28
            s_add_u32 {T}, {T}, {W}
            s_mul_i32 {T}, {T}, {8*896}
            v_mul_u32_u24 {pa}, 896, {c8}
            v_lshl_add_u32 {pa}, {pu}, 7, {pa}
            v_add_u32 {pa}, {T}, {pa}''')
            for st in range(p0, p1):
                n = st % 7; x = px[st % 2]
                pf.atom(f'''v_add_u32 {x}, {n}, {pu}
                v_subrev_u32 {t}, 7, {x}
                v_min_u32 {x}, {x}, {t}
                v_mul_u32_u24 {x}, {32*896}, {x}
                s_mov_b32 {T}, {(st // 7) * 896*896}
                v_add3_u32 {x}, {x}, {pa}, {T}
                global_load_dword {d[st % 4]}, {x}, s[28:29]''')
        s('@waitvm ust\ns_barrier')
        flag(f'buffer_store_dwordx4 {one}, {fg}, s[52:55], 0 offen sc1', 1, '0xff00')
        if 'U' in o['hord']: s(tD)
        stamp()
        s.add(gl); npf = self.I('npf', 4); s.add(pf[:npf]); pf = pf[npf:]
        acc = V.alloc(2); p = V.alloc(8)
        s(f'v_mov_b32 {acc[0]}, 0\nv_mov_b32 {acc[1]}, 0')
        for j in range(0, 56, 2):
            if j % 14 == 12 and pf: s.append(pf.pop(0))
            Q = [p.sub(0, 4), p.sub(4, 4)]
            for h in range(2):
                x, g = xs[j + h], gs[j + h]; q = Q[h]
                s(f'''v_lshlrev_b32 {q[0]}, 16, {x}
                v_and_b32 {q[1]}, 0xffff0000, {x}
                v_lshlrev_b32 {q[2]}, 16, {g}
                v_and_b32 {q[3]}, 0xffff0000, {g}''')
            for q in Q: s(f'v_pk_mul_f32 {q.sub(0, 2)}, {q.sub(0, 2)}, {q.sub(2, 2)}')
            for q in Q: s(f'v_cvt_pk_bf16_f32 {q[2]}, {q[0]}, {q[1]}')
            for q in Q: s(f'v_lshlrev_b32 {q[0]}, 16, {q[2]}\nv_and_b32 {q[1]}, 0xffff0000, {q[2]}')
            for q in Q: s(f'v_pk_add_f32 {acc}, {acc}, {q.sub(0, 2)}')
        s(f'''v_add_f32 {acc[0]}, {acc[0]}, {acc[1]}
        v_add_f32_dpp {acc[0]}, {acc[0]}, {acc[0]} quad_perm:[1,0,3,2] row_mask:0xf bank_mask:0xf
        v_add_f32_dpp {acc[0]}, {acc[0]}, {acc[0]} quad_perm:[2,3,0,1] row_mask:0xf bank_mask:0xf
        v_cvt_pk_bf16_f32 {t}, {acc[0]}, {acc[0]}
        v_lshlrev_b32 {t}, 16, {t}
        v_mul_f32 {t}, {f2h(-LOG2E)}, {t}
        v_exp_f32 {t}, {t}
        v_add_f32 {t}, 1.0, {t}
        v_rcp_f32 {t}, {t}
        v_cvt_pk_bf16_f32 {t}, {t}, {t}
        v_lshlrev_b32 {acc[0]}, 16, {t}
        v_sub_f32 {t}, 1.0, {acc[0]}
        v_cvt_pk_bf16_f32 {t}, {t}, {t}
        v_lshlrev_b32 {acc[1]}, 16, {t}
        v_lshrrev_b32 {t}, 2, v0
        v_lshlrev_b32 {t}, 3, {t}
        s_lshl_b32 {T}, {T3}, 9
        s_add_u32 {T}, {T}, {GOFF}
        s_mov_b32 exec_lo, 0x11111111
        s_mov_b32 exec_hi, 0x11111111
        buffer_store_dwordx2 {acc}, {t}, s[52:55], {T} offen sc1
        s_mov_b64 exec, -1
        s_waitcnt vmcnt(0)
        s_barrier''')
        flag(f'buffer_store_dwordx4 {one}, {fg}, s[52:55], 0 offen sc1', 2, '0xff')
        s.add(pf)
        stamp(); self.real(s, 4); self.stamp_out(s)
        s('s_endpgm')
        return s

    def dropper(self, body):
        drop = self.opt.get('drop', '').split(',')
        if drop == ['']: return body
        nb = Stream()
        fp = ('v_mul_f32', 'v_fma_f32', 'v_add_f32', 'v_exp', 'v_rcp', 'v_cvt', 'v_pk', 'v_mov_b32_dpp')
        for a in body:
            b = []
            for i in a:
                if i.kind == 'pseudo' and i.op in ('wait', 'waitvm', 'waitlg'):
                    keep = [t for t in i.arg if not (('dma' in drop and t.startswith(('it', 'udma')) and t not in ('it0', 'it1')) or ('vm' in drop and t[0] == 'h') or ('ds' in drop and t[0] in 'rcdk' and t != 'clr'))]
                    if keep or not i.arg: b.append(Ins(f'@{i.op} ' + ' '.join(keep)))
                    continue
                if 'dma' in drop and i.kind == 'dma': continue
                if 'u' in drop and i.tag == 'udma': i = Ins(i.text.replace('s[52:55]', 's[40:43]').replace(str(self.sDM), '0'), i.tag)
                if 'd1' in drop and i.op == 's_add_u32' and i.text.endswith(str(896*896)): i = Ins(i.text.replace(str(896*896), '0'))
                if 'h0' in drop and i.tag == 'hst0': i = Ins(i.text.replace(' sc1', ''), i.tag)
                if 'mfma' in drop and i.kind == 'mfma': continue
                if 'ds' in drop and i.kind == 'ds': continue
                if 'dsw' in drop and i.kind == 'ds' and 'write' in i.op and not i.tag: continue
                if 'valu' in drop and i.op.startswith(fp): continue
                if 'vm' in drop and i.kind == 'vmem' and i.tag and i.tag[0] == 'h': continue
                b.append(i)
            if b: nb.append(b)
        return nb
    def build(self):
        V = self.V; A = self.A; S = self.S; o = self.opt; I = self.I; F = self.F; G = self.G
        for k in COST: COST[k] = F('c_' + k, COST[k])
        c0 = G(1, 27, 3) + 1
        order = self.plan()
        m = Stream(); m.add(self.entry())
        blk = Reg('v', 188, 64); big = Reg('v', 76, 112)
        for i in range(76, 252): V.free_[i] = False
        head, early, late = self.setup(sub_regs(big, 96, 112)); m.add(head)
        self.Xr = A.alloc(224, 4); AW = A.alloc(32, 4); self.Wf = [AW.sub(8*i, 8) for i in range(3)]
        kr = sub_regs(big, 0, 72)
        R = [kr.alloc(6), kr.alloc(2), kr.alloc(8), kr.alloc(2), kr.alloc(2), kr.alloc(2), kr.alloc(2), kr.alloc(16), kr.alloc(18)]
        k0, k1, k1w, k1b, k2, k3, k3w = self.kexch(sub_regs(big, 80, 96))
        allq = []
        for it in order:
            x = self.dma(it)
            for k in range(4): allq.append((it, k, x[:-4], x[len(x) - 4 + k]))
        def hdr(it, k, h, force):
            d = Stream()
            if k == 0:
                prev = [y for y in order[:order.index(it)] if self.slots[y] == self.slots[it]]
                if prev and prev[-1] >= 21: d(f'@waitlg dr{prev[-1]}')
                d.add(h)
            elif force: d.append([Ins(y.text) for y in h[-1]])
            return d
        def take(n):
            d = Stream()
            for j in range(n):
                it, k, h, x = allq.pop(0); d.add(hdr(it, k, h, j == 0)); d.append(x)
            return d
        npl = I('npl', 20); early.add(late[:npl]); late = Stream(late[npl:])
        m.add(sprinkle(early, take(I('nd0', 8)), I('ev00', 0), I('ev0', 11)))
        m.add(self.st('pro')); m.add(self.kg_dt(R[1][0]))
        dp = take(I('ndp', 0))
        extra = {}; nk = I('nk', 8); kd = I('kd', 16 - nk)
        for j in range(nk):
            it, k, h, x = allq.pop(0); extra.setdefault(min(15, kd + j), []).append((h[-1], x))
        cpos = o.get('clr', 'k1')
        if o.get('mt'):
            x = [Ins(f'global_load_dword {self.fl}, {self.tv}, {self.tb}')]
            if o.get('mtw'): x = [Ins(f's_cmp_eq_u32 {self.sRG}, 0'), Ins('s_cbranch_scc0 L_mt'), Ins(x[0].text, 'nocount'), Ins('L_mt:')]
            if I('mt', 0) < 0: m.append(x)
            else: extra.setdefault(I('mt', 0) - 1, []).append((None, x))
        if cpos[0] == 'k':
            for j, x in enumerate(self.clears()): extra.setdefault(int(cpos[1:]) + j, []).append((None, x))
        kg, mf1 = self.kgen(R, extra)
        if dp:
            fc = min(n for n, a in enumerate(kg) if a[0].kind == 'ds')
            hd = sprinkle(Stream(kg[:fc - 1]), dp, I('pv0', 2), I('pv', 6)); hd(f's_mov_b32 m0, {self.sSC}'); kg = Stream(hd + kg[fc - 1:])
        m.add(kg); m.add(self.st('kgen'))
        V.free(self.par, self.dt, self.af)
        self.acc = [[blk.sub(16*i, 16) for i in range(4)], [big.sub(16*i, 16) for i in range(4)]]
        sc = Sched(I('budget', 5))
        self.gemm1(sc, mf1)
        self.Z = self.acc[0]; self.D = self.Xr.sub(0, 112); self.Hf = self.Xr.sub(112, 112); self.acc2 = self.acc[1]
        et = big.sub(96, 16); eo = self.kacc
        self.cF = [big.sub(64, 32), AW]
        assert c0 == sc.n()
        fr0 = self.conv(sc); a0 = sc.n()
        sc.even(fr0, G(1, 26, 0), per=3)
        use = {}; nl = I('nlast', 2); nd = max(nl, I('nd', 0))
        for p in range(2):
            for n in range(7 - nl * p):
                use[p, n] = sc.n()
                for fr in range(2):
                    for sl in range(1 if (p and n >= 7 - nd) else 0, 4): self.g2(sc, p, n, fr, sl)
        b0 = use[1, 0]; done = {}
        for n in range(7 - nl, 7): use[1, n] = sc.n() + 2 * (n - 7 + nl)
        for sl in (1, 2, 3, 0):
            for n in range(7 - (nl if sl else nd), 7):
                for fr in range(2): done[sl] = self.g2(sc, 1, n, fr, sl)
        e1 = sc.n()
        kw1 = I('kw1', 168); kw3 = I('kw3', 208)
        kb = min(self.bar_gap(b) for b in list(self.syncs()) + [14] if b and self.bar_gap(b) > kw1 + 1)
        assert kw1 > self.bar_gap(1) and kb + 8 < kw3 and kw3 + 3 < self.bar_gap(14)
        gk3 = sc.place(Stream(k0), 0, 10); gk3 = sc.place(Stream(k1 + k1b), 10, min(kw1, 30)) + 1
        for j, a in enumerate(k1w): sc.gaps[kw1 + j * I('kws', 1)].insert(0, a)
        sc.at(max(kb, kw3 - 14), k2)
        for j, a in enumerate(k3w): sc.gaps[kw3 + j * I('kws', 1)].insert(0, a)
        for x in o.get('blk', '').split(','):
            if x: sc.block.add(int(x))
        tu = G(1, I('tu', 14)); gu = tu + I('tu2', 20)
        pl, pc = self.poll(f'global_load_dword {self.fl}, {self.fa}, s[34:35] sc1')
        ta = I('ta', 118); sc.at(ta, pl); sc.at(tu - 4, pc)
        sc.gaps[tu - 3](f'v_lshlrev_b32 {self.fa}, 6, {self.fa}\nv_add_u32 {self.fa}, {FG + 128}, {self.fa}')
        pl, pc = self.poll(f'buffer_load_dword {self.fl}, {self.fa}, s[52:55], 0 offen sc1')
        sc.mem(pl, tu); sc.at(gu, pc)
        e0s = G(1, 0, 1); e0end = G(1, I('e0end', 19))
        gf0 = e0end + I('f0', 22); assert gf0 > gu
        sc.mem(self.setflags(0), gf0)
        hold = I('hold', 1); hs = []
        for q in range(4):
            g = (e0s + (e0end - e0s) * (q + 1) // 4) | 1; hs.append(g)
            for j in range(hold + 1): sc.block.add(g + 2*j)
        if cpos[0] != 'k':
            g = e0s if cpos == 'e0' else int(cpos)
            for x in self.clears():
                wh, _ = sc.mem(Stream([x]), g)
                for j in range(1, hold + 1): sc.block.add(wh[0] + 2*j)
                g = wh[0] + I('cev', 8)
        parts = self.epi(1, o.get('epi', 'pk'), et, eo)
        pl2, pc2 = self.poll(f'buffer_load_dword {self.fl}, {self.fp}, s[52:55], 0 offen sc1')
        for n in range(7):
            assert self.drs[n] >= G(1, 2*n + 2) and self.drs[n] + 10 < use[0, n]
            sc.even(self.d_reads(0, n), self.drs[n], per=2)
        g = c0 - 1
        for n, (kind, x) in enumerate(parts):
            if n == len(parts) - 1 and not I('p2', 0): x[0:0] = pl2
            if kind == 'pk':
                sc.gaps[g].append([i for a in x for i in a])
                if n + 1 < len(parts) and parts[n + 1][0] != 'pk': g += 1
            else: g = sc.place(x, g, a0, dense=True, budget=I('eb', 9))
        ge1 = g; sc.at(g, self.st('epi1'))
        for j in range(I('hold1', 2)): sc.block.add((ge1 + 1 | 1) + 2*j)
        gf1 = ge1 + I('f1', 24); sc.mem(self.setflags(1), gf1)
        g = I('dstart', 0); udone = False; first = True
        while allq:
            it, k, h, x = allq.pop(0)
            if k == 0:
                if not udone and max(g, self.iss[it]) > gu:
                    wh, g = sc.mem(self.u_dma(), max(g, gu + 1), step=2); udone = True; assert wh[-1] < self.bar_gap(14) - 8
                g = max(g, self.iss[it])
            d = hdr(it, k, h, first); first = False
            st = F('s0', 2) if it < 14 else (F('s1', 2) if it < 21 else F('s2', 2))
            if c0 <= g < ge1 and I('est', 1):
                gg = int(g)
                while sc.hasmem(gg): gg += 1
                sc.gaps[gg][0:0] = d + [x]; wh = [gg]; g = gg + F('se', 1)
            else:
                wh, g = sc.mem(Stream([x]), g, step=st); sc.tail(wh[0] - 1, d)
            if k == 3 and it == 16: g += I('pz', 0)
            assert wh[-1] < self.need(it), (it, wh, self.need(it))
            if o.get('occ') and k == 3: print(it, 'slot', self.slots[it], wh, 'need', self.need(it))
        gdma = g
        hg = {}; g = max(gdma, a0 - I('h0', 40), ge1 + 4)
        for p in range(2):
            if p: g = max(g, b0 - I('h1', 32))
            for n in range(7):
                if p: g = max(g, use[0, n] + 7)
                x = Stream()
                if p and n == 0:
                    for rt in range(2): x(f'v_add_u32 {self.hv[rt]}, {28*4096}, {self.hv[rt]}')
                for k in range(4): x(self.h_ld(n, k), tag=f'h{p}{n}')
                wh, g = sc.mem(x, g, step=F('hstep', 2)); hg[p, n] = wh
                if n == 2: g += I('hz', 0)
                assert wh[3] < use[p, n] - 1, (p, n, wh, use[p, n])
        if I('p2', 0): sc.at((hg[0, 0][0] - I('p2', 0)) & ~1, pl2)
        sc.at(hg[0, 0][0] - 1, pc2)
        pl3, pc3 = self.poll(f'buffer_load_dword {self.fl}, {self.fh}, s[52:55], 0 offen sc1')
        sc.at((hg[1, 0][0] - I('p3', 20)) & ~1, pl3)
        sc.at(hg[1, 0][0] - 1, pc3)
        sc.place(late, gk3, G(0, 27, 0)); self.late_free()
        sc.at(G(0, 27, 3), self.st('p0'))
        sc.place(k3, max(kb + 3, kw3 - 10), kw3)
        eo = big.sub(64, 16)
        parts = self.epi(0, 'woven', et, eo); g = e0s
        for q in range(4):
            sc.at(hs[q], self.hst(0, q, eo))
            sc.place(Stream(parts[2*q][1] + parts[2*q + 1][1]), g, hs[q]); g = hs[q]
        sc.at(g, self.st('e0'))
        sc.gaps[c0 - 1][0:0] = self.st('p1')
        V.free(self.vx, self.vw, self.aw, *self.ax)
        sc.at(hg[1, 0][0] + 1, self.g_load())
        sc.at(a0 - 1, self.st('conv'))
        lo = 0
        for n in range(7):
            lo = max(lo, use[0, n] + 8, min(use[1, n], use[1, 7 - nl] - 8 * (6 - n)) - I('dl', 14))
            lo = sc.even(self.d_reads(1, n), lo, per=2) + 1
            assert lo < use[1, n], (n, lo, use[1, n])
        for p in range(2):
            for n in range(7): sc.tail(use[p, n] - 1, Stream()(f'@wait dr{21 + 7*p + n} h{p}{n}'))
        cp0, cp1, cp2, cp3, cp4 = self.convpost()
        sc.place(cp0, a0 - 10, a0 - 6)
        g = sc.place(cp1, a0 - I('cpe', 4), e1, dense=True, budget=I('cb', 6))
        sc.gaps[g]('@waitlg carry\ns_barrier')
        g = sc.place(cp2, g, e1, dense=True); g2 = g + (g & 1)
        if I('xa', 1):
            g3 = g + 1; g = sc.place(cp3, g3, g3 + 6); g2 = g + (g & 1)
        else: g = sc.place(cp3, g + 1, e1, dense=True)
        sc.at(g2, cp4[:1]); g = max(g, g2 + 2); g += g & 1; sc.at(g, cp4[1:])
        sc.at(g, self.st('ast')); sc.at(b0 - 1, self.st('g2a'))
        pre, ald, ap1, ap2, ap3, ap3k, wr, rd, fin, pre_add = self.final(sub_regs(blk))
        gl = e1 - I('al', 18); ap = I('ap', 0); stg = I('stg', 0)
        sc.place(pre, g + 2, min(gl, done[1]))
        sc.mem(ald, gl)
        wd = I('wd', 1); ws = F('ws', 1); tailw = Stream(); gw = 0
        if ap: sc.place(ap1, e1 - ap, e1 - ap + 3)
        for k in (1, 2, 3):
            gw = max(gw, done[k] + wd)
            for a in wr[k]:
                if int(gw) < e1: sc.gaps[int(gw)].append(a)
                else: tailw.append(a)
                gw += ws
        rdall = Stream()('@waitlg\ns_barrier'); rdall.add(self.st('f0'))
        for q in range(4):
            for k in (1, 2, 3): rdall.append(rd[k][q])
        gb = int(gw - ws) + I('bd', 2)
        if gb < e1 - 1: sc.at(gb, rdall[:-12]); sc.place(rdall[-12:], gb, e1, dense=True, budget=6); rdall = Stream()
        woven_a = ap >= I('apw', 10)
        if woven_a: sc.place(Stream(ap2 + ap3), e1 - ap + 5, e1)
        for k in (1, 2, 3):
            for g in range(done[k], done[k] + wd):
                if sc.occ(g) < 5: sc.gaps[g](f's_nop {4 - int(sc.occ(g))}')
        for g in range(7, sc.n(), 16): sc.at(g, self.st(f'g{g + 1}'))
        m.add(self.dropper(sc.out())); m.add(tailw)
        m.add(self.st('g2b'))
        if not ap and I('apo', 0): m.add(ap1)
        m.add(rdall)
        if not ap and not I('apo', 0): m.add(ap1)
        m.add(self.st('f1'))
        m.add(fin((1, 2, 3), not woven_a))
        if o.get('trace'): m.add(self.st('fin')); m('s_waitcnt vmcnt(0)')
        m.add(self.st('end')); self.real(m, 4); self.stamp_out(m)
        m('s_endpgm')
        m.add(self.cold); m.add(self.helper())
        m('L_end:\ns_endpgm')
        if o.get('occ'): print(' '.join(str(int(sc.occ(g))) for g in range(sc.n()))); print('gdma', gdma, 'hs', hs, 'c0', c0, 'ge1', ge1, 'a0', a0, 'b0', b0, hg, 'late', len(late))
        k = K(KN + '_kernel', vgpr=256, agpr=256)
        k.lines = finalize2(m, not o.get('noalign'), 'v255' if o.get('trace') else None)
        txt = build([k], [(KN + '_kernel', 256, 256, 163840)])
        if o.get('trace'): txt = '; trace: ' + ' '.join(finalize2.names) + '\n' + txt
        return txt

if __name__ == '__main__':
    opt = dict(a.split('=') if '=' in a else (a, 1) for a in sys.argv[2:])
    open(sys.argv[1], 'w').write(Gen8(opt).build())
```
